```python
import torch

def _softmax(x, axis=-1):
    return torch.softmax(x, dim=axis)
def _gelu(x):
    return torch.nn.functional.gelu(x, approximate="tanh")
def _silu(x):
    return torch.nn.functional.silu(x)
def _sigmoid(x):
    return torch.sigmoid(x)
def _layernorm(x, axis=-1, eps=1e-5):
    m = x.mean(dim=axis, keepdim=True)
    v = x.var(dim=axis, keepdim=True, unbiased=False)
    return (x - m) / torch.sqrt(v + eps)
def _scatter_add(tgt, idx, src, axis=0):
    return tgt.clone().index_add_(axis, idx, src)
def _segment_sum(src, seg, n):
    out = torch.zeros((n,) + src.shape[1:], dtype=src.dtype)
    return out.index_add_(0, seg, src)
def _pad(x, pw):
    flat = tuple(v for pair in reversed(pw) for v in pair)
    return torch.nn.functional.pad(x, flat)

kernel_name = 'gated_mix__sliding_local_dilated__swiglu_ffn__prompt'

def setup_inputs():

    _w = (lambda a: (lambda t: t.to(torch.bfloat16) if t.is_floating_point() else t)(torch.as_tensor(a)))
    def _A_setup():
        B, S, D = 1, 2048, 640
        return {
            "x": _w((lambda *s: torch.randn(*s, dtype=torch.bfloat16) * 0.05)(B, S, D)),
            "wqkv": _w((lambda *s: torch.randn(*s, dtype=torch.bfloat16) * 0.8)(D, 3 * D)),
            "wo": _w((lambda *s: torch.randn(*s, dtype=torch.bfloat16) * 0.05)(D, D)),
        }
    _A_in = _A_setup()

    def _B_setup():
        B, S, D, F = 1, 2048, 640, 1536
        return {
            "x": _w((lambda *s: torch.randn(*s, dtype=torch.bfloat16) * 0.05)(B, S, D)),
            "w_gate": _w((lambda *s: torch.randn(*s, dtype=torch.bfloat16) * 0.2)(D, F)),
            "w_up": _w((lambda *s: torch.randn(*s, dtype=torch.bfloat16) * 0.2)(D, F)),
            "w_down": _w((lambda *s: torch.randn(*s, dtype=torch.bfloat16) * 0.2)(F, D)),
        }
    _B_in = _B_setup()

    return {
        "A_x": _A_in["x"],
        "A_wqkv": _A_in["wqkv"],
        "A_wo": _A_in["wo"],
        "B_x": _B_in["x"],
        "B_w_gate": _B_in["w_gate"],
        "B_w_up": _B_in["w_up"],
        "B_w_down": _B_in["w_down"],
        "gate_w": _w((lambda *s: torch.randn(*s, dtype=torch.bfloat16) * 0.05)(640) * 16.0),
    }

def reference(A_x, A_wqkv, A_wo, B_x, B_w_gate, B_w_up, B_w_down, gate_w):
    def _A_ref(x, wqkv, wo):
        B, S, D = x.shape
        H = 32; Dh = D // H
        W, dil = 8, 2
        qkv = (lambda x, *d: x.permute(*d))((x @ wqkv).reshape(B, S, 3, H, Dh), 2, 0, 3, 1, 4)
        q, k, v = qkv[0], qkv[1], qkv[2]
        scale = Dh ** -0.5
        pos = torch.arange(S)
        off = torch.arange(W) * dil
        idx = pos[:, None] - off[None, :]
        mask = idx >= 0
        idx_c = torch.where(mask, idx, 0).reshape(-1)
        kg = k[:, :, idx_c, :].reshape(B, H, S, W, Dh)
        vg = v[:, :, idx_c, :].reshape(B, H, S, W, Dh)
        logits = torch.einsum("bhsd,bhswd->bhsw", q, kg) * scale
        logits = torch.where(mask[None, None, :, :], logits, -1e9)
        attn = _softmax(logits, axis=-1)
        o = torch.einsum("bhsw,bhswd->bhsd", attn, vg)
        return (lambda x, *d: x.permute(*d))(o, 0, 2, 1, 3).reshape(B, S, D) @ wo

    def _B_ref(x, w_gate, w_up, w_down):
        g = _silu(x @ w_gate)
        u = x @ w_up
        return (g * u) @ w_down

    x = A_x
    g = _sigmoid((x * gate_w).sum(-1, keepdims=True))
    a = _A_ref(x, A_wqkv, A_wo)
    b = _B_ref(x, B_w_gate, B_w_up, B_w_down)
    return g * a + (1 - g) * b
```

```python
class Asm:
    def __init__(self):
        self.lines = []
        self.reset_counters()
    def reset_counters(self):
        self.vm = []
        self.lg = []
    def __call__(self, s):
        for l in s.split("\n"):
            l = l.strip()
            if l: self.lines.append("    " + l)
    def label(self, name): self.lines.append(name + ":")
    def raw(self, s): self.lines.append(s)
    def comment(self, s): self.lines.append("    ; " + s)
    def vmem(self, s, tag=None):
        self(s); self.vm.append(tag)
    def lds(self, s, tag=None):
        self(s); self.lg.append(tag)
    def _need(self, q, tags):
        last = -1
        for i, t in enumerate(q):
            if t is not None and t in tags: last = i
        if last < 0: return None
        return len(q) - 1 - last
    def wait(self, vm=(), lg=(), vm_all=False, lg_all=False):
        parts = []
        nv = (0 if self.vm else None) if vm_all else self._need(self.vm, set(vm))
        nl = (0 if self.lg else None) if lg_all else self._need(self.lg, set(lg))
        if nv is not None:
            nv = min(nv, 63); parts.append(f"vmcnt({nv})"); self.vm = self.vm[len(self.vm)-nv:] if nv else []
        if nl is not None:
            nl = min(nl, 15); parts.append(f"lgkmcnt({nl})"); self.lg = self.lg[len(self.lg)-nl:] if nl else []
        if parts: self("s_waitcnt " + " ".join(parts))
        return bool(parts)
    def text(self): return "\n".join(self.lines) + "\n"

def vr(b, n=1, k="v"):
    return f"{k}{b}" if n == 1 else f"{k}[{b}:{b+n-1}]"
def sr(b, n=1):
    return f"s{b}" if n == 1 else f"s[{b}:{b+n-1}]"
class R:
    def __init__(self, k, i): self.k, self.i = k, i
    def __call__(self, n=1, off=0): return vr(self.i + off, n, self.k)
```

```python
import sys, math
from asmlib import *

NAME = "gated_mix__sliding_local_dilated__swiglu_ffn__prompt"
ACT_SIZE = 128*68*1024
W2P_OFF = 0x900000; W2P_SIZE = 8*68*5*1024
G_OFF = 0xC00000; G_SIZE = 8192
TS = 68*1024
import struct
def f2u(x): return struct.unpack("<I", struct.pack("<f", x))[0]
LOG2E = 1.4426950408889634

def srd(a, d, base, size, off=0):
    if off:
        a(f"s_add_u32 s{d}, s{base}, {hex(off)}")
        a(f"s_addc_u32 s{d+1}, s{base+1}, 0")
    else:
        a(f"s_mov_b32 s{d}, s{base}")
        a(f"s_mov_b32 s{d+1}, s{base+1}")
    a(f"s_mov_b32 s{d+2}, {size}")
    a(f"s_mov_b32 s{d+3}, 0x20000")

class Gaps:
    def __init__(self): self.m = []; self.f = []; self.cost = []
    def add(self, fn): self.m.append(fn); self.f.append([]); self.cost.append(0); return len(self.m)-1
    def put(self, i, fn, cost=1): self.f[i].append(fn); self.cost[i] += cost
    def emit(self):
        for m, fl in zip(self.m, self.f):
            m()
            for f in fl: f()

def voffX_code(a, dst, lane, t0, t1):
    a(f"s_lshl_b32 s52, s44, 2")
    a(f"v_lshrrev_b32 v{t0}, 4, v{lane}")
    a(f"v_add_u32 v{t0}, s52, v{t0}")
    a(f"v_xor_b32 v{t0}, v{t0}, v{lane}")
    a(f"v_and_b32 v{t0}, 7, v{t0}")
    a(f"v_lshlrev_b32 v{t0}, 4, v{t0}")
    a(f"v_lshrrev_b32 v{t1}, 3, v{lane}")
    a(f"v_mul_u32_u24 v{t1}, 1280, v{t1}")
    a(f"v_add_u32 v{dst}, v{t0}, v{t1}")

def prepack_setup(a):
    a("s_lshr_b32 s59, s53, 1")
    a("s_and_b32 s60, s53, 1")
    a("s_lshl_b32 s60, s60, 2")
    a("s_add_u32 s60, s60, s44")
    a("s_sub_u32 s54, s59, 20")
    a("s_lshl_b32 s54, s54, 5")
    a("s_mov_b32 s55, 16\ns_mov_b32 s56, 4\ns_mov_b32 s57, 8")
    a("s_cmp_lt_u32 s59, 20")
    a("s_cselect_b32 s36, s8, s16")
    a("s_cselect_b32 s37, s9, s17")
    a(f"s_mov_b32 s38, {1536*1280}")
    a(f"s_cselect_b32 s38, {640*1280}, s38")
    a("s_mov_b32 s39, 0x20000")
    a("s_mul_i32 s61, s59, 160")
    a(f"s_sub_u32 s61, s61, {160*16-16}")
    a("s_cmp_lt_u32 s59, 20")
    a("s_cselect_b32 s54, s61, s54")
    a("s_cselect_b32 s55, 80, s55")
    a("s_cselect_b32 s56, 40, s56")
    a("s_cselect_b32 s57, 20, s57")
    a("s_mul_i32 s61, s59, 40")
    a("s_cmp_lt_u32 s59, 16")
    a("s_cselect_b32 s54, s61, s54")
    a("s_cselect_b32 s55, 20, s55")
    a("s_cselect_b32 s56, 4, s56")
    a("s_cselect_b32 s57, 8, s57")
    for r in (54, 55, 56, 57): a(f"s_mul_i32 s{r}, s{r}, 1280")
    a("s_mul_i32 s61, s60, 160")
    a("s_add_u32 s54, s54, s61")
    a("s_mul_i32 s58, s60, 68")
    a("s_add_u32 s58, s58, s59")
    a("s_mul_i32 s58, s58, 5120")
    a("s_mul_i32 s62, s44, 8704")
    srd(a, 40, 20, W2P_SIZE, W2P_OFF)

def prepack_ops(a, lane, vdma, vtr, vst, t0, fr):
    addr = []
    def L(s): return lambda: a(s)
    addr += [L(f"v_lshrrev_b32 v{t0}, 4, v{lane}"),
             L(f"v_and_b32 v{vdma}, 15, v{lane}"),
             L(f"v_sub_u32 v{vdma}, v{vdma}, v{t0}"),
             L(f"v_sub_u32 v{vdma}, v{vdma}, v{t0}"),
             L(f"v_cmp_gt_u32 vcc, 10, v{vdma}"),
             L(f"v_lshlrev_b32 v{vdma}, 4, v{vdma}"),
             L(f"v_mul_u32_u24 v{t0}, 1280, v{t0}"),
             L(f"v_add_u32 v{vdma}, v{vdma}, v{t0}"),
             L(f"v_mov_b32 v{t0}, 0x40000000"),
             L(f"v_cndmask_b32 v{vdma}, v{t0}, v{vdma}, vcc"),
             L(f"v_lshrrev_b32 v{t0}, 4, v{lane}"),
             L(f"v_mul_u32_u24 v{vtr}, 2176, v{t0}"),
             L(f"v_bfe_u32 v{t0}, v{lane}, 2, 2"),
             L(f"v_mul_u32_u24 v{t0}, 288, v{t0}"),
             L(f"v_add_u32 v{vtr}, v{vtr}, v{t0}"),
             L(f"v_and_b32 v{t0}, 3, v{lane}"),
             L(f"v_lshlrev_b32 v{t0}, 3, v{t0}"),
             L(f"v_add3_u32 v{vtr}, v{vtr}, v{t0}, s62"),
             L(f"v_lshlrev_b32 v{vst}, 4, v{lane}")]
    dma = []
    for n in range(8):
        q, j = n >> 1, n & 1
        def f(n=n, q=q, j=j):
            a(f"s_add_u32 m0, s62, {n*1088}")
            a("s_mov_b32 s61, s54")
            if q >> 1: a("s_add_u32 s61, s61, s55")
            if q & 1: a("s_add_u32 s61, s61, s56")
            if j: a("s_add_u32 s61, s61, s57")
            a.vmem(f"buffer_load_dwordx4 v{vdma}, s[36:39], s61 offen lds", "pp")
        dma.append(f)
    rd = []
    for jt in range(5):
        for j in range(2):
            def f(jt=jt, j=j):
                a.wait(vm=["pp"])
                a.lds(f"ds_read_b64_tr_b16 {vr(fr+4*jt+2*j,2)}, v{vtr} offset:{j*1088+jt*32}", f"ppr{jt}")
            rd.append(f)
    st = []
    for jt in range(5):
        def f(jt=jt):
            a.wait(lg=[f"ppr{jt}"])
            if jt == 4:
                a("s_add_u32 s58, s58, 4096")
                a.vmem(f"buffer_store_dwordx4 {vr(fr+4*jt,4)}, v{vst}, s[40:43], s58 offen")
            else:
                a.vmem(f"buffer_store_dwordx4 {vr(fr+4*jt,4)}, v{vst}, s[40:43], s58 offen offset:{jt*1024}")
        st.append(f)
    return addr, dma, rd, st

def gen_F(a):
    a.reset_counters()
    LANE = 185; T0, T1 = 186, 187
    XB = 98304
    VX = 176; VW = 180; VOW = 182; VOX = 183; VST = 184
    srd(a, 24, 4, 2048*1280)
    a("s_and_b32 s52, s44, 1")
    a("s_cmp_eq_u32 s52, 0")
    a("s_cselect_b32 s28, s12, s14")
    a("s_cselect_b32 s29, s13, s15")
    a(f"s_mov_b32 s30, {640*3072}")
    a("s_mov_b32 s31, 0x20000")
    voffX_code(a, VOX, LANE, T0, T1)
    a("s_mul_i32 s46, s64, 192")
    a("s_lshl_b32 s52, s44, 3")
    a("s_add_u32 s46, s46, s52")
    a("s_mul_i32 s46, s46, 1280")
    a("s_lshl_b32 s48, s44, 10")
    a(f"s_add_u32 s48, s48, {XB}")
    a("s_and_b32 s52, s44, 1")
    a("s_lshl_b32 s52, s52, 2")
    a(f"v_lshrrev_b32 v{T0}, 4, v{LANE}")
    a(f"v_or_b32 v{T1}, s52, v{T0}")
    a(f"v_lshlrev_b32 v{T1}, 1, v{T1}")
    a(f"v_xor_b32 v{T1}, v{T1}, v{LANE}")
    a(f"v_and_b32 v{T1}, 15, v{T1}")
    a(f"v_lshlrev_b32 v{T1}, 4, v{T1}")
    a(f"v_mul_u32_u24 v{T0}, 3072, v{T0}")
    a(f"v_add_u32 v{VOW}, v{T0}, v{T1}")
    a("s_lshr_b32 s52, s44, 1")
    a(f"s_mul_i32 s45, s52, {4*3072}")
    a("s_lshl_b32 s61, s63, 8")
    a("s_add_u32 s45, s45, s61")
    a(f"s_sub_u32 s45, s45, {8*3072}")
    a("s_lshl_b32 s47, s44, 10")

    def dmaW(p, i):
        def f():
            a(f"s_add_u32 m0, s47, {(p%3)*32768 + i*4096}")
            a(f"s_add_u32 s45, s45, {8*3072}")
            a.vmem(f"buffer_load_dwordx4 v{VOW}, s[28:31], s45 offen lds", ("W", p, i))
        return f
    def dmaX(p, i):
        if p < 10: off = i*40960 + 128*p
        else:
            e = 4*(p-10) + i; off = (4 + e//10)*40960 + (e%10)*128
        def f():
            a(f"s_add_u32 m0, s48, {(p%3)*16384 + i*4096}")
            a(f"s_add_u32 s61, s46, {off}")
            a.vmem(f"buffer_load_dwordx4 v{VOX}, s[24:27], s61 offen lds", ("X", p, i))
        return f
    def dmas(p):
        if p < 10: return [dmaX(p, i) for i in range(4)] + [dmaW(p, i) for i in range(8)]
        if p < 15: return [dmaX(p, i) for i in range(4)]
        return []
    def tags(p):
        return [("X", p, i) for i in range(4)] + [("W", p, i) for i in range(8)]

    d0 = dmas(0)
    for f in d0: f()
    d1 = dmas(1)
    srd(a, 32, 20, ACT_SIZE)
    a("s_lshl_b32 s52, s44, 1")
    a(f"v_bfe_u32 v{T0}, v{LANE}, 2, 3")
    a(f"v_xor_b32 v{T1}, s52, v{T0}")
    a(f"v_lshlrev_b32 v{T1}, 5, v{T1}")
    a(f"v_lshl_add_u32 v{T1}, v{T0}, 8, v{T1}")
    a(f"v_lshrrev_b32 v{T0}, 5, v{LANE}")
    a(f"v_lshl_add_u32 v{T1}, v{T0}, 12, v{T1}")
    a(f"v_and_b32 v{T0}, 3, v{LANE}")
    a(f"v_lshl_add_u32 v{VW}, v{T0}, 3, v{T1}")
    a(f"v_xor_b32 v{VW+1}, 32, v{VW}")
    a(f"v_bfe_u32 v{T0}, v{LANE}, 1, 3")
    a(f"v_lshrrev_b32 v{T1}, 5, v{LANE}")
    a(f"v_xor_b32 v{T0}, v{T0}, v{T1}")
    a(f"v_lshlrev_b32 v{T0}, 4, v{T0}")
    a(f"v_and_b32 v{T1}, 31, v{LANE}")
    a(f"v_lshl_add_u32 v{T0}, v{T1}, 7, v{T0}")
    a(f"v_add_u32 v{VX}, {XB}, v{T0}")
    for s in range(1, 4): a(f"v_xor_b32 v{VX+s}, {s<<5}, v{VX}")
    a(f"v_bfe_u32 v{T0}, v{LANE}, 4, 1")
    a(f"v_mul_u32_u24 v{T0}, {TS}, v{T0}")
    a(f"v_lshrrev_b32 v{T1}, 5, v{LANE}")
    a(f"v_lshl_add_u32 v{T0}, v{T1}, 8, v{T0}")
    a(f"v_and_b32 v{T1}, 15, v{LANE}")
    a(f"v_lshl_add_u32 v{VST}, v{T1}, 4, v{T0}")
    a(f"s_mul_i32 s49, s64, {12*TS}")
    a("s_lshl_b32 s52, s63, 2")
    a("s_add_u32 s52, s52, s44")
    a("s_add_u32 s52, s52, 20")
    a("s_lshl_b32 s52, s52, 10")
    a("s_add_u32 s49, s49, s52")
    a(f"s_mov_b32 s50, {hex(f2u(-LOG2E))}")
    a("s_mul_i32 s53, s64, 12")
    a("s_add_u32 s53, s53, s63")
    prepack_setup(a)
    for f in d1[:6]: f()

    def Wreg(t, u):
        return R("a", 8*t + 4*u) if t < 32 else R("v", 192 + 8*(t-32) + 4*u)
    def XA(t, c): return R("v", 128 + 16*(t & 1) + 4*c)
    def XBr(t): return R("v", 160 + 4*(t & 3))
    def rdW(t, u, j):
        def f():
            a.lds(f"ds_read_b64_tr_b16 {Wreg(t,u)(2, 2*j)}, v{VW+u} offset:{(t%4)*8192 + j*2048}", ("w", t, u))
        return f
    def rdXA(t, c):
        p = t // 4
        def f():
            a.lds(f"ds_read_b128 {XA(t,c)(4)}, v{VX + t%4} offset:{(p%3)*16384 + c*4096}", ("x", t, c))
        return f
    def rdXB(t):
        e = (t-40)//4; p = 10 + e//4; i = e % 4
        def f():
            a.lds(f"ds_read_b128 {XBr(t)(4)}, v{VX + t%4} offset:{(p%3)*16384 + i*4096}", ("x", t, 0))
        return f
    def readsA(t):
        return [rdW(t,0,0), rdW(t,0,1), rdXA(t,0), rdW(t,1,0), rdW(t,1,1), rdXA(t,1), rdXA(t,2), rdXA(t,3)]
    def barrier(vmtags):
        def f():
            a.wait(vm=vmtags, lg_all=True)
            a("s_barrier")
        return f
    def wslot_adv(p):
        d = 32768 if p % 3 else -65536
        def f():
            for u in range(2):
                if d > 0: a(f"v_add_u32 v{VW+u}, {d}, v{VW+u}")
                else: a(f"v_subrev_u32 v{VW+u}, {-d}, v{VW+u}")
        return f

    barrier([("X",0,i) for i in range(4)] + [("W",0,0),("W",0,1)])()
    for f in readsA(0): f()

    G = Gaps()
    def mf(acc, w, x, first, need):
        def f():
            a.wait(lg=need)
            c = "0" if first else vr(acc,16)
            a(f"v_mfma_f32_32x32x16_bf16 {vr(acc,16)}, {w(4)}, {x(4)}, {c}")
        return f
    idx = {}
    for t in range(40):
        for c in range(4):
            for u in range(2):
                idx[(t,c,u)] = G.add(mf(32*c+16*u, Wreg(t,u), XA(t,c), t == 0, [("w",t,u),("x",t,c)]))
    for t in range(40, 120):
        k = (t-40) % 40
        acc = 128 if t < 80 else 0
        for u in range(2):
            idx[(t,0,u)] = G.add(mf(acc+16*u, Wreg(k,u), XBr(t), k == 0, [("x",t,0)]))
    for t in range(40):
        g0 = idx[(t,0,0)]
        nxt = t+1
        if nxt < 40: rds = readsA(nxt)
        else: rds = [rdXB(40), rdXB(41), rdXB(42)]
        needbar = (nxt % 4 == 0) or nxt < 4
        if needbar:
            if nxt < 4: vt = [("W",0,2*nxt),("W",0,2*nxt+1)]
            else: vt = tags(nxt//4)
            G.put(g0+1, barrier(vt), 2)
            if nxt % 4 == 0 and nxt < 40: G.put(g0+1, wslot_adv(nxt//4), 2)
            pos = [1,1,2,2,3,4,5,6]
        else:
            pos = [0,0,1,2,3,4,5,6]
        for f, o in zip(rds, pos): G.put(g0+o, f)
    for t in range(40, 117):
        g0 = idx[(t,0,0)]
        nxt = t+3
        if (nxt-40) % 16 == 0:
            G.put(g0, barrier(tags(10 + (nxt-40)//16)), 2)
        G.put(g0, rdXB(nxt))
    def barpos(q):
        if q <= 10: return idx[(4*q-1,0,0)] + 1
        return idx[(40 + 16*(q-10) - 3, 0, 0)]
    def spread(fs, lo, hi, cost):
        n = len(fs)
        for i, f in enumerate(fs):
            G.put(lo + (hi-lo)*i//n, f, cost)
    spread(d1[6:] + dmas(2), 0, barpos(1), 3)
    for p in range(3, 15):
        spread(dmas(p), barpos(p-2)+1, barpos(p-1), 3)
    def epi(acc, ch, u):
        ops = []
        def L(s): return (lambda: a(s), 1)
        def T(s): return (lambda: a(s), 2)
        for r in range(8): ops.append(L(f"v_mul_f32 v{acc+8+r}, v{acc+r}, v{acc+8+r}"))
        for r in range(8): ops.append(L(f"v_mul_f32 v{acc+r}, s50, v{acc+r}"))
        ops2 = []
        for r in range(8): ops2.append(T(f"v_exp_f32 v{acc+r}, v{acc+r}"))
        for r in range(8): ops2.append(L(f"v_add_f32 v{acc+r}, 1.0, v{acc+r}"))
        for r in range(8): ops2.append(T(f"v_rcp_f32 v{acc+r}, v{acc+r}"))
        for r in range(8): ops2.append(L(f"v_mul_f32 v{acc+8+r}, v{acc+r}, v{acc+8+r}"))
        for r in range(4): ops2.append(L(f"v_cvt_pk_bf16_f32 v{acc+r}, v{acc+8+2*r}, v{acc+9+2*r}"))
        def st():
            a(f"s_add_u32 s61, s49, {ch*2*TS}")
            a.vmem(f"buffer_store_dwordx4 {vr(acc,4)}, v{VST}, s[32:35], s61 offen offset:{u*512}")
        ops2.append((st, 2))
        return ops + ops2
    BUD = 6
    def fill(ops, start):
        g = start
        for f, c in ops:
            while g < len(G.m)-1 and G.cost[g] + c > BUD: g += 1
            G.put(g, f, c)
        return g
    gB1 = idx[(40,0,0)]; gB2 = idx[(80,0,0)]
    pa, pd, pr, ps = prepack_ops(a, LANE, VOW, T1, 188, T0, 32)
    g = fill([(f,1) for f in pa], gB1)
    g = fill([(f,4) for f in pd], g)
    g = gB1 + 4
    for ch in range(4):
        for u in range(2):
            g = fill(epi(32*ch+16*u, ch, u), g)
            if ch == 0: assert g < gB2 - 4
            if ch == 1: gch1 = g
    g = max(g, gB2 + 4)
    for u in range(2): g = fill(epi(128+16*u, 4, u), g)
    g2 = fill([(f,1) for f in pr], max(gch1+2, g-30))
    g2 = fill([(f,2) for f in ps], g2+3)
    print("F: epilogue ends at gap", g, g2, "of", len(G.m), file=sys.stderr)
    G.emit()
    a("s_nop 7\ns_nop 3")
    e0 = epi(0, 5, 0); e1 = epi(16, 5, 1)
    for (f0,_), (f1,_) in zip(e0, e1): f0(); f1()
    a("s_endpgm")

def gen_spare(a):
    a.reset_counters()
    LANE = 185
    a("s_add_u32 s53, s3, 132")
    prepack_setup(a)
    pa, pd, pr, ps = prepack_ops(a, LANE, 182, 187, 188, 186, 32)
    for f in pa + pd + pr + ps: f()
    a("s_endpgm")

def gen_Q(a):
    a.reset_counters()
    LANE = 255; T0, T1 = 254, 253
    a(f"v_mov_b32 v{LANE}, v185")
    WS = 17920; XB = 4*WS; XS = 20480
    VX = 232; VW1 = 234; VW3 = 235; VW4 = 236; VOW = 237; VOX = 238
    srd(a, 24, 4, 2048*1280)
    srd(a, 28, 6, 640*3840)
    voffX_code(a, VOX, LANE, T0, T1)
    a("s_mul_i32 s46, s64, 144")
    a("s_lshl_b32 s52, s44, 3")
    a("s_add_u32 s46, s46, s52")
    a("s_sub_u32 s46, s46, 16")
    a("s_mul_i32 s46, s46, 1280")
    a("s_max_i32 s65, s46, 0")
    a("s_lshl_b32 s48, s44, 10")
    a(f"s_add_u32 s48, s48, {XB}")
    a(f"v_subrev_u32 v{T0}, 34, v{LANE}")
    a(f"v_cmp_lt_u32 vcc, 31, v{LANE}")
    a(f"v_mov_b32 v{T1}, 3840")
    a("s_nop 0")
    a(f"v_cndmask_b32 v{T0}, v{LANE}, v{T0}, vcc")
    a(f"v_cndmask_b32 v{VOW}, 0, v{T1}, vcc")
    a(f"v_mul_u32_u24 v{T1}, 205, v{T0}")
    a(f"v_lshrrev_b32 v{T1}, 11, v{T1}")
    a(f"v_mul_u32_u24 v{T1}, {1280-160}, v{T1}")
    a(f"v_add_u32 v{VOW}, v{VOW}, v{T1}")
    a(f"v_lshl_add_u32 v{VOW}, v{T0}, 4, v{VOW}")
    a(f"v_cmp_gt_u32 vcc, 30, v{T0}")
    a(f"v_mov_b32 v{T1}, 0x40000000")
    a(f"s_mul_i32 s45, s44, {2*3840}")
    a(f"v_cndmask_b32 v{VOW}, v{T1}, v{VOW}, vcc")
    a("s_mul_i32 s52, s63, 160")
    a("s_add_u32 s45, s45, s52")
    a(f"s_sub_u32 s45, s45, {8*3840}")
    a("s_mul_i32 s47, s44, 1088")
    def dmaW(t, i):
        def f():
            a(f"s_add_u32 m0, s47, {(t%4)*WS + i*4480}")
            a(f"s_add_u32 s45, s45, {8*3840}")
            a.vmem(f"buffer_load_dwordx4 v{VOW}, s[28:31], s45 offen lds", ("W", t))
        return f
    def dmaX(p, i):
        def f():
            a(f"s_add_u32 m0, s48, {(p%3)*XS + i*4096}")
            a(f"s_add_u32 s61, {'s65' if i == 0 else 's46'}, {i*40960 + 128*p}")
            a.vmem(f"buffer_load_dwordx4 v{VOX}, s[24:27], s61 offen lds", ("X", p))
        return f
    dW = lambda t: [dmaW(t, i) for i in range(4)] if t < 20 else []
    dX = lambda p: [dmaX(p, i) for i in range(5)] if p < 10 else []
    for f in dW(0) + dX(0) + dW(1): f()
    srd(a, 32, 20, ACT_SIZE)
    srd(a, 36, 18, 1280)
    srd(a, 40, 20, G_SIZE, G_OFF)
    a(f"v_bfe_u32 v{T0}, v{LANE}, 1, 3")
    a(f"v_lshrrev_b32 v{T1}, 4, v{LANE}")
    a(f"v_xor_b32 v{T0}, v{T0}, v{T1}")
    a(f"v_lshlrev_b32 v{T0}, 4, v{T0}")
    a(f"v_and_b32 v{T1}, 15, v{LANE}")
    a(f"v_lshl_add_u32 v{T0}, v{T1}, 7, v{T0}")
    a(f"v_add_u32 v{VX}, {XB}, v{T0}")
    a(f"v_xor_b32 v{VX+1}, 64, v{VX}")
    a(f"v_lshrrev_b32 v{T0}, 4, v{LANE}")
    a(f"v_mul_u32_u24 v{T0}, 4480, v{T0}")
    a(f"v_bfe_u32 v{T1}, v{LANE}, 2, 2")
    a(f"v_mul_u32_u24 v{T1}, 544, v{T1}")
    a("s_mul_i32 s52, s44, 40")
    a(f"v_add3_u32 v{T0}, v{T0}, v{T1}, s52")
    a(f"v_and_b32 v{T1}, 3, v{LANE}")
    a(f"v_lshl_add_u32 v{VW1}, v{T1}, 3, v{T0}")
    a(f"v_add_u32 v{VW3}, 320, v{VW1}")
    a(f"v_add_u32 v{VW4}, 32, v{T0}")
    a(f"v_cmp_eq_u32 vcc, 0, v{T1}")
    a("s_nop 1")
    a(f"v_cndmask_b32 v{VW3}, v{VW3}, v{VW4}, vcc")
    a(f"v_add_u32 v{VW4}, 192, v{T0}")
    a(f"v_add_u32 v252, 320, v{T0}")
    a(f"v_cmp_eq_u32 vcc, 1, v{T1}")
    a("s_nop 1")
    a(f"v_cndmask_b32 v{VW4}, v{VW4}, v252, vcc")
    a(f"v_add_u32 v252, 352, v{T0}")
    a(f"v_cmp_eq_u32 vcc, 2, v{T1}")
    a("s_nop 1")
    a(f"v_cndmask_b32 v{VW4}, v{VW4}, v252, vcc")
    for f in dW(2): f()

    ORD = [3, 4, 2, 1]
    def Wf(t, o): return R("a", 80 + 16*(t&1) + 4*o)
    def Xf(t, tile): return R("a", 40*(t&1) + 4*tile)
    def rdW(t, o, j):
        T = ORD[o]
        reg = {1: VW1, 2: VW1, 3: VW3, 4: VW4}[T]
        off = (t%4)*WS + j*2176 + (160 if T == 2 else 0)
        return lambda: a.lds(f"ds_read_b64_tr_b16 {Wf(t,o)(2,2*j)}, v{reg} offset:{off}", ("w",t,o))
    def rdX(t, tile):
        p = t//2
        return lambda: a.lds(f"ds_read_b128 {Xf(t,tile)(4)}, v{VX + t%2} offset:{(p%3)*XS + tile*2048}", ("x",t,tile))
    def reads(t):
        r = [rdW(t,0,0), rdW(t,0,1), rdX(t,0)]
        for o in range(1,4): r += [rdW(t,o,0), rdW(t,o,1)]
        return r + [rdX(t,tile) for tile in range(1,10)]
    def barrier(vmtags):
        def f():
            a.wait(vm=vmtags, lg_all=True)
            a("s_barrier")
        return f
    barrier([("W",0),("X",0)])()
    for f in reads(0): f()
    G = Gaps()
    start = {}
    for t in range(20):
        for tile in range(10):
            for o in range(4):
                if tile == 0 and o == 3: continue
                def f(t=t, tile=tile, o=o):
                    a.wait(lg=[("w",t,o),("x",t,tile)])
                    acc = 16*tile + 4*o
                    c = "0" if t == 0 else vr(acc,4)
                    a(f"v_mfma_f32_16x16x32_bf16 {vr(acc,4)}, {Wf(t,o)(4)}, {Xf(t,tile)(4)}, {c}")
                i = G.add(f)
                if tile == 0 and o == 0: start[t] = i
    ZX = 160; ZG = 200
    def zaddr():
        a(f"v_lshrrev_b32 v{T0}, 4, v{LANE}")
        a(f"v_mul_u32_u24 v{T0}, 1280, v{T0}")
        a(f"v_and_b32 v{T1}, 15, v{LANE}")
        a(f"v_lshlrev_b32 v{T1}, 4, v{T1}")
        a(f"v_add_u32 v{T0}, v{T0}, v{T1}")
        a("s_lshl_b32 s66, s64, 3")
        a("s_add_u32 s66, s66, s63")
        a("s_lshl_b32 s66, s66, 2")
        a("s_add_u32 s66, s66, s44")
        a("s_lshl_b32 s66, s66, 3")
        a("s_mul_i32 s67, s66, 1280")
        a("s_add_u32 s68, s67, 5120")
    zl = []
    for i in range(5):
        zl.append(lambda i=i: a.vmem(f"buffer_load_dwordx4 {vr(ZG+4*i,4)}, v{T1}, s[36:39], 0 offen offset:{256*i}", "z"))
    for ps_ in range(2):
        for i in range(5):
            zl.append(lambda i=i, ps_=ps_: a.vmem(f"buffer_load_dwordx4 {vr(ZX+20*ps_+4*i,4)}, v{T0}, s[24:27], s{67+ps_} offen offset:{256*i}", "z"))
    for t in range(20):
        g0 = start[t]
        dm = []
        if t+1 < 20:
            G.put(g0+2, barrier([("W",t+1),("X",(t+1)//2)]))
            for i, f in enumerate(reads(t+1)): G.put(g0+3+2*i, f)
        if t == 0: dm = dX(1) + dW(3) + dW(4) + dX(2)[:2]
        elif t == 1: dm = dX(2)[2:] + dW(5) + dX(3)[:3]
        else:
            dm = dW(t+4)
            if t % 2 == 1: dm += dX((t-1)//2+3)[:3]
            else: dm += dX((t-2)//2+3)[3:]
        if t == 16: dm = dm + [zaddr] + zl[:5]
        if t == 17: dm = dm + zl[5:]
        for i, f in enumerate(dm): G.put(g0 + 4 + (34*i)//len(dm), f)
    G.emit()
    a("s_barrier")
    a.wait(vm=["z"])
    for ps_ in range(2):
        for i in range(20):
            c = "0" if i == 0 else f"v{220+ps_}"
            a(f"v_dot2_f32_bf16 v{220+ps_}, v{ZX+20*ps_+i}, v{ZG+i}, {c}")
    a("s_nop 3")
    for sh in (8,4,2,1):
        for ps_ in range(2):
            a(f"v_add_f32_dpp v{220+ps_}, v{220+ps_}, v{220+ps_} row_ror:{sh} row_mask:0xf bank_mask:0xf")
        a("s_nop 1")
    a(f"s_mov_b32 s50, {hex(f2u(-LOG2E))}")
    for op in ["v_mul_f32 {0}, s50, {0}", "v_exp_f32 {0}, {0}", "v_add_f32 {0}, 1.0, {0}", "v_rcp_f32 {0}, {0}"]:
        for ps_ in range(2): a(op.format(f"v{220+ps_}"))
    a(f"v_lshrrev_b32 v{T0}, 4, v{LANE}")
    a(f"v_lshlrev_b32 v{T0}, 2, v{T0}")
    a("s_lshl_b32 s67, s66, 2")
    a.vmem(f"buffer_store_dword v220, v{T0}, s[40:43], s67 offen")
    a.vmem(f"buffer_store_dword v221, v{T0}, s[40:43], s67 offen offset:16")
    def setmask(s, fn):
        m = 0
        for l in range(64):
            if fn(l): m |= 1 << l
        a(f"s_mov_b32 s{s}, {hex(m & 0xffffffff)}")
        a(f"s_mov_b32 s{s+1}, {hex(m >> 32)}")
    PAR, IP0, IP1, G0, F0, F1 = 70, 72, 74, 76, 78, 80
    setmask(PAR, lambda l: l & 1)
    isprev = lambda l, j: 4*(l>>4) + 2*j + (l&1) > (l&15)
    setmask(IP0, lambda l: isprev(l,0))
    setmask(IP1, lambda l: isprev(l,1))
    setmask(G0, lambda l: l < 16)
    a("s_cmp_eq_u32 s64, 0")
    a(f"s_cselect_b64 s[{F0}:{F0+1}], s[{IP0}:{IP0+1}], 0")
    a(f"s_cselect_b64 s[{F1}:{F1+1}], s[{IP1}:{IP1+1}], 0")
    MP = 240
    NEG = 244; VWR = 245; VRM = 246; VRX = 247; VSO = 248; VSX = 249
    a(f"v_mov_b32 v{T0}, 0xffff")
    a(f"v_mov_b32 v{T1}, 0xffff0000")
    a(f"v_cndmask_b32 v{T0}, v{T0}, v{T1}, s[{PAR}:{PAR+1}]")
    for j, ip in enumerate((IP0, IP1)):
        a(f"v_cndmask_b32 v{MP+j}, 0, v{T0}, s[{ip}:{ip+1}]")
        a(f"v_cndmask_b32 v{MP+2+j}, v{T0}, 0, s[{ip}:{ip+1}]")
    a(f"v_mov_b32 v{NEG}, {hex(f2u(-1e30))}")
    a("s_mul_i32 s52, s44, 10240")
    a(f"v_and_b32 v{T0}, 15, v{LANE}")
    a(f"v_lshlrev_b32 v{T0}, 6, v{T0}")
    a(f"v_lshrrev_b32 v{T1}, 4, v{LANE}")
    a(f"v_lshlrev_b32 v{T1}, 4, v{T1}")
    a(f"v_add3_u32 v{VWR}, v{T0}, v{T1}, s52")
    a(f"v_lshrrev_b32 v{T0}, 2, v{LANE}")
    a(f"v_lshlrev_b32 v{T0}, 6, v{T0}")
    a(f"v_add_u32 v{T0}, s52, v{T0}")
    a(f"v_add_u32 v{VRX}, 40, v{T0}")
    a(f"v_and_b32 v{T1}, 3, v{LANE}")
    a(f"v_cmp_eq_u32 vcc, 0, v{T1}")
    a(f"v_lshlrev_b32 v{T1}, 4, v{T1}")
    a("s_nop 0")
    a(f"v_cndmask_b32 v{T1}, v{T1}, 24, vcc")
    a(f"v_add_u32 v{VRM}, v{T0}, v{T1}")
    a(f"v_lshrrev_b32 v{T0}, 5, v{LANE}")
    a(f"v_mul_u32_u24 v{T0}, {TS}, v{T0}")
    a(f"v_and_b32 v{T1}, 31, v{LANE}")
    a(f"v_lshl_add_u32 v{VSO}, v{T1}, 4, v{T0}")
    a(f"v_and_b32 v{T1}, 15, v{LANE}")
    a(f"v_lshlrev_b32 v{VSX}, 3, v{T1}")
    a(f"s_mul_i32 s82, s64, {9*TS}")
    a("s_lshl_b32 s52, s63, 11")
    a("s_lshl_b32 s61, s44, 9")
    a("s_add_u32 s83, s82, s52")
    a("s_add_u32 s83, s83, s61")
    a("s_lshl_b32 s52, s63, 2")
    a("s_add_u32 s52, s52, s44")
    a("s_lshl_b32 s52, s52, 7")
    a("s_add_u32 s84, s82, s52")
    a(f"s_add_u32 s84, s84, {16*1024}")
    a(f"s_mov_b32 s85, {hex(f2u(LOG2E * 20**-0.5))}")
    B = lambda t: 16*t
    SR = lambda t: 160 + 8*(t-1)
    for t in range(10):
        b = B(t)
        for i in range(6):
            a(f"v_cvt_pk_bf16_f32 v{b+i}, v{b+2*i}, v{b+2*i+1}")
        a.lds(f"ds_write_b128 v{VWR}, {vr(b,4)} offset:{t*1024}", ("vw",t))
        if t > 0:
            a(f"v_cndmask_b32 v{b+6}, 0, v{b}, s[{G0}:{G0+1}]")
            a(f"v_cndmask_b32 v{b+7}, 0, v{b+1}, s[{G0}:{G0+1}]")
            a(f"v_cvt_pk_bf16_f32 v{b+8}, v{b+12}, v{b+13}")
            a(f"v_cvt_pk_bf16_f32 v{b+9}, v{b+14}, v{b+15}")
    a("s_nop 1")
    for t in range(1, 10):
        a(f"v_mfma_f32_16x16x32_bf16 {vr(SR(t),4)}, {vr(B(t-1)+2,4)}, {vr(B(t)+6,4)}, 0")
        a(f"v_mfma_f32_16x16x32_bf16 {vr(SR(t)+4,4)}, {vr(B(t)+2,4)}, {vr(B(t)+6,4)}, 0")
    for t in range(10):
        a.lds(f"ds_read_b64_tr_b16 {vr(2*t,2,'a')}, v{VRM} offset:{t*1024}", ("vr",t))
        a.lds(f"ds_read_b64_tr_b16 {vr(20+2*t,2,'a')}, v{VRX} offset:{t*1024}", ("vr",t))
    TT = range(1, 10)
    def each(fmt):
        for t in TT:
            b = B(t); s = SR(t)
            a(fmt.format(**{f"b{i}": f"v{b+i}" for i in range(16)}, **{f"s{i}": f"v{s+i}" for i in range(8)}))
    par = f"s[{PAR}:{PAR+1}]"
    each("v_cndmask_b32 {b12}, {s0}, {s1}, " + par)
    each("v_cndmask_b32 {b13}, {s4}, {s5}, " + par)
    each("v_cndmask_b32 {b14}, {s2}, {s3}, " + par)
    each("v_cndmask_b32 {b15}, {s6}, {s7}, " + par)
    each("v_cndmask_b32 {b10}, {b13}, {b12}, " + f"s[{IP0}:{IP0+1}]")
    each("v_cndmask_b32 {b11}, {b15}, {b14}, " + f"s[{IP1}:{IP1+1}]")
    a(f"v_cndmask_b32 v{B(1)+10}, v{B(1)+10}, v{NEG}, s[{F0}:{F0+1}]")
    a(f"v_cndmask_b32 v{B(1)+11}, v{B(1)+11}, v{NEG}, s[{F1}:{F1+1}]")
    def xreduce(op):
        for sw in ("v_permlane32_swap_b32", "v_permlane16_swap_b32"):
            each("v_mov_b32 {b13}, {b12}")
            each(sw + " {b12}, {b13}")
            each(op + " {b12}, {b12}, {b13}")
    each("v_max_f32 {b12}, {b10}, {b11}")
    xreduce("v_max_f32")
    each("v_mul_f32 {b12}, s85, {b12}")
    each("v_fma_f32 {b10}, {b10}, s85, -{b12}")
    each("v_fma_f32 {b11}, {b11}, s85, -{b12}")
    each("v_exp_f32 {b10}, {b10}")
    each("v_exp_f32 {b11}, {b11}")
    each("v_add_f32 {b12}, {b10}, {b11}")
    xreduce("v_add_f32")
    each("v_rcp_f32 {b12}, {b12}")
    each("v_mul_f32 {b10}, {b10}, {b12}")
    each("v_mul_f32 {b11}, {b11}, {b12}")
    each("v_cvt_pk_bf16_f32 {b10}, {b10}, {b10}")
    each("v_cvt_pk_bf16_f32 {b11}, {b11}, {b11}")
    each("v_and_b32 {s0}, {b10}, " + f"v{MP}")
    each("v_and_b32 {s1}, {b11}, " + f"v{MP+1}")
    each("v_and_b32 {s2}, {b10}, " + f"v{MP+2}")
    each("v_and_b32 {s3}, {b11}, " + f"v{MP+3}")
    a.wait(lg_all=True)
    a("s_nop 1")
    for t in TT:
        a(f"v_mfma_f32_16x16x32_bf16 {vr(SR(t)+4,4)}, {vr(2*(t-1),4,'a')}, {vr(SR(t),4)}, 0")
        a(f"v_mfma_f32_16x16x32_bf16 {vr(B(t)+12,4)}, {vr(20+2*(t-1),4,'a')}, {vr(SR(t),4)}, 0")
    a("s_nop 7")
    for t in TT:
        d = B(t) if t % 2 == 1 else B(t-1) + 2
        a(f"v_cvt_pk_bf16_f32 v{d}, v{SR(t)+4}, v{SR(t)+5}")
        a(f"v_cvt_pk_bf16_f32 v{d+1}, v{SR(t)+6}, v{SR(t)+7}")
        a(f"v_cvt_pk_bf16_f32 v{B(t)+10}, v{B(t)+12}, v{B(t)+13}")
        a(f"v_cvt_pk_bf16_f32 v{B(t)+11}, v{B(t)+14}, v{B(t)+15}")
    a("s_nop 1")
    for t in (1,3,5,7,9):
        a(f"v_permlane32_swap_b32 v{B(t)}, v{B(t)+2}")
        a(f"v_permlane32_swap_b32 v{B(t)+1}, v{B(t)+3}")
    for t in TT:
        a(f"s_add_u32 s61, s84, {(t-1)*TS}")
        a.vmem(f"buffer_store_dwordx2 {vr(B(t)+10,2)}, v{VSX}, s[32:35], s61 offen")
    for t in (1,3,5,7,9):
        a(f"s_add_u32 s61, s83, {(t-1)*TS}")
        if t == 9: a("s_mov_b32 exec_hi, 0")
        a.vmem(f"buffer_store_dwordx4 {vr(B(t),4)}, v{VSO}, s[32:35], s61 offen")
    a("s_endpgm")

def gen_K1(a):
    a.raw(".p2align 8")
    a.raw(".globl k1_kernel\n.type k1_kernel,@function")
    a.label("k1_kernel")
    a("s_cmp_ge_u32 s2, 256")
    a("s_cbranch_scc1 L_k1_exit")
    a("s_load_dwordx16 s[4:19], s[0:1], 0")
    a("s_load_dwordx2 s[20:21], s[0:1], 80")
    a("v_lshrrev_b32 v1, 6, v0")
    a("v_and_b32 v185, 63, v0")
    a("s_and_b32 s3, s2, 7")
    a("v_readfirstlane_b32 s44, v1")
    a("s_lshr_b32 s22, s2, 3")
    a("s_and_b32 s23, s3, 1")
    a("s_lshr_b32 s3, s3, 1")
    a("s_mul_i32 s51, s23, 3")
    a("s_sub_u32 s51, 18, s51")
    a("s_cmp_lt_u32 s22, s51")
    a("s_cbranch_scc0 L_k1_notF")
    a("s_mul_i32 s64, s22, 43")
    a("s_lshr_b32 s64, s64, 7")
    a("s_mul_i32 s52, s64, 3")
    a("s_sub_u32 s63, s22, s52")
    a("s_mul_i32 s52, s3, 3")
    a("s_add_u32 s63, s63, s52")
    a("s_mul_i32 s52, s23, 6")
    a("s_add_u32 s64, s64, s52")
    a("s_waitcnt lgkmcnt(0)")
    gen_F(a)
    a.label("L_k1_notF")
    a("s_sub_u32 s22, s22, s51")
    a("s_and_b32 s63, s22, 1")
    a("s_lshl_b32 s52, s3, 1")
    a("s_add_u32 s63, s63, s52")
    a("s_lshr_b32 s64, s22, 1")
    a("s_mul_i32 s52, s23, 7")
    a("s_add_u32 s64, s64, s52")
    a("s_waitcnt lgkmcnt(0)")
    a("s_cmp_ge_u32 s64, 15")
    a("s_cbranch_scc1 L_k1_spare")
    gen_Q(a)
    a.label("L_k1_spare")
    gen_spare(a)
    a.label("L_k1_exit")
    a("s_endpgm")

def gen_K2(a):
    a.reset_counters()
    a.raw(".p2align 8")
    a.raw(".globl k2_kernel\n.type k2_kernel,@function")
    a.label("k2_kernel")
    a("s_cmp_ge_u32 s2, 256")
    a("s_cbranch_scc1 L_k2_exit")
    a("s_load_dwordx2 s[20:21], s[0:1], 80")
    a("s_load_dwordx2 s[18:19], s[0:1], 64")
    LANE = 160; VT = 164; VA = 168; VB = 169; VE = 172; GR = 176; T0 = 161; T1 = 162
    a("v_lshrrev_b32 v1, 6, v0")
    a(f"v_and_b32 v{LANE}, 63, v0")
    a("s_and_b32 s3, s2, 7")
    a("v_readfirstlane_b32 s44, v1")
    a("s_lshl_b32 s3, s3, 2")
    a("s_bfe_u32 s22, s2, 0x20003")
    a("s_add_u32 s3, s3, s22")
    a("s_lshr_b32 s22, s2, 5")
    a(f"v_lshlrev_b32 v{VA}, 4, v{LANE}")
    a(f"v_add_u32 v{VB}, 4096, v{VA}")
    for T in range(4): a(f"v_add_u32 v{VT+T}, {T*TS}, v{VA}")
    a(f"v_lshrrev_b32 v{T0}, 4, v{LANE}")
    a(f"v_lshlrev_b32 v{T0}, 8, v{T0}")
    a(f"v_and_b32 v{T1}, 15, v{LANE}")
    a(f"v_lshl_add_u32 v{T0}, v{T1}, 3, v{T0}")
    for T in range(4): a(f"v_add_u32 v{VE+T}, {T*TS}, v{T0}")
    a(f"s_mul_i32 s45, s3, {4*TS}")
    a(f"s_mul_i32 s46, s22, {68*5120}")
    a("s_lshl_b32 s47, s44, 2")
    a("s_add_u32 s48, s44, 16")
    a("s_mul_i32 s49, s44, 12")
    a("s_add_u32 s49, s49, 20")
    for i, r in enumerate((47, 48, 49)):
        a(f"s_lshl_b32 s{50+i}, s{r}, 10")
        a(f"s_add_u32 s{50+i}, s{50+i}, s45")
        a(f"s_mul_i32 s{53+i}, s{r}, 5120")
        a(f"s_add_u32 s{53+i}, s{53+i}, s46")
    a("s_waitcnt lgkmcnt(0)")
    srd(a, 24, 20, ACT_SIZE)
    srd(a, 28, 20, W2P_SIZE, W2P_OFF)
    srd(a, 32, 20, G_SIZE, G_OFF)
    srd(a, 36, 18, 2048*1280)
    steps = [(0,i) for i in range(4)] + [(1,0)] + [(2,i) for i in range(12)]
    NB = 5
    def buf(st): return 36*(st % NB)
    def loads(st):
        kind, i = steps[st]
        b = buf(st)
        ops = []
        def pre():
            a(f"s_add_u32 s60, s{50+kind}, {i*1024}")
            a(f"s_add_u32 s61, s{53+kind}, {i*5120}")
        first = True
        order = [("w",0),("a",0),("w",1),("w",2),("w",3),("w",4),("a",1),("a",2),("a",3)]
        for ty, n in order:
            def f(ty=ty, n=n, first=first):
                if first: pre()
                if ty == "w":
                    if n < 4: a.vmem(f"buffer_load_dwordx4 {vr(b+16+4*n,4,'a')}, v{VA}, s[28:31], s61 offen offset:{n*1024}", (st,ty,n))
                    else: a.vmem(f"buffer_load_dwordx4 {vr(b+16+4*n,4,'a')}, v{VB}, s[28:31], s61 offen", (st,ty,n))
                elif kind == 1:
                    a.vmem(f"buffer_load_dwordx2 {vr(b+4*n,2,'a')}, v{VE+n}, s[24:27], s60 offen", (st,ty,n))
                    a.vmem(f"buffer_load_dwordx2 {vr(b+4*n+2,2,'a')}, v{VE+n}, s[24:27], s60 offen offset:128", (st,ty,n))
                else:
                    a.vmem(f"buffer_load_dwordx4 {vr(b+4*n,4,'a')}, v{VT+n}, s[24:27], s60 offen", (st,ty,n))
            ops.append(f); first = False
        return ops
    PF = NB - 1
    for st in range(PF):
        for f in loads(st): f()
    a(f"v_and_b32 v{T0}, 15, v{LANE}")
    a(f"v_lshlrev_b32 v{T0}, 2, v{T0}")
    a("s_lshl_b32 s62, s3, 8")
    for T in range(4):
        a.vmem(f"buffer_load_dword v{GR+T}, v{T0}, s[32:35], s62 offen offset:{T*64}", "g")
    G = Gaps()
    for st in range(17):
        b = buf(st); kind, i = steps[st]
        accb = 0 if kind < 2 else 80
        first = st == 0 or st == 5
        g0 = None
        for T in range(4):
            for jt in range(5):
                def f(st=st, T=T, jt=jt, b=b, accb=accb, first=first):
                    a.wait(vm=[(st,"w",jt),(st,"a",T)])
                    acc = accb + 4*(5*T+jt)
                    c = "0" if first else vr(acc,4)
                    a(f"v_mfma_f32_16x16x32_bf16 {vr(acc,4)}, {vr(b+16+4*jt,4,'a')}, {vr(b+4*T,4,'a')}, {c}")
                gi = G.add(f)
                if g0 is None: g0 = gi
        if st + PF < 17:
            for n, f in enumerate(loads(st+PF)): G.put(g0 + 2*n, f)
    G.emit()
    a.wait(vm=["g"])
    for T in range(4): a(f"v_sub_f32 v{GR+4+T}, 1.0, v{GR+T}")
    for T in range(4):
        for i in range(20): a(f"v_mul_f32 v{20*T+i}, v{GR+T}, v{20*T+i}")
    for T in range(4):
        for i in range(20): a(f"v_fmac_f32 v{20*T+i}, v{GR+4+T}, v{80+20*T+i}")
    a("s_mul_i32 s60, s44, 5120")
    a(f"v_add_u32 v{T0}, s60, v{VA}")
    a(f"v_add_u32 v{T1}, 40960, v{T0}")
    for T in range(4):
        for jt in range(5):
            reg = T0 if T < 2 else T1
            a.lds(f"ds_write_b128 v{reg}, {vr(20*T+4*jt,4)} offset:{(T%2)*20480 + jt*1024}")
    a("s_mul_i32 s60, s44, 20480")
    T0 = 163
    a(f"v_add_u32 v{T0}, s60, v{VA}")
    a.wait(lg_all=True)
    a("s_barrier")
    for jt in range(5):
        for s in range(4):
            a.lds(f"ds_read_b128 {vr(80+20*s+4*jt,4)}, v{T0} offset:{s*5120 + jt*1024}", ("r",jt))
    a(f"v_and_b32 v{T1}, 15, v{LANE}")
    a(f"v_mul_u32_u24 v{T1}, 1280, v{T1}")
    a(f"v_lshrrev_b32 v{VB}, 4, v{LANE}")
    a(f"v_lshl_add_u32 v{T1}, v{VB}, 3, v{T1}")
    a("s_lshl_b32 s60, s3, 2")
    a("s_add_u32 s60, s60, s44")
    a(f"s_mul_i32 s60, s60, {16*1280}")
    a("s_mul_i32 s61, s22, 160")
    a("s_add_u32 s60, s60, s61")
    for jt in range(5):
        a.wait(lg=[("r",jt)])
        for i in range(4):
            r = 80 + 4*jt + i
            a(f"v_add_f32 v{r}, v{r}, v{r+20}")
            a(f"v_add_f32 v{r+40}, v{r+40}, v{r+60}")
        for i in range(4):
            r = 80 + 4*jt + i
            a(f"v_add_f32 v{r}, v{r}, v{r+40}")
        r = 80 + 4*jt
        a(f"v_cvt_pk_bf16_f32 v{r}, v{r}, v{r+1}")
        a(f"v_cvt_pk_bf16_f32 v{r+1}, v{r+2}, v{r+3}")
        a.vmem(f"buffer_store_dwordx2 {vr(r,2)}, v{T1}, s[36:39], s60 offen offset:{32*jt}")
    a.label("L_k2_exit")
    a("s_endpgm")

def kd(name, nv=512, acc=256):
    return f""".p2align 6
.amdhsa_kernel {name}
  .amdhsa_next_free_vgpr {nv}
  .amdhsa_next_free_sgpr 96
  .amdhsa_accum_offset {acc}
  .amdhsa_group_segment_fixed_size 0
  .amdhsa_kernarg_size 88
  .amdhsa_user_sgpr_count 2
  .amdhsa_user_sgpr_kernarg_segment_ptr 1
  .amdhsa_system_sgpr_workgroup_id_x 1
.end_amdhsa_kernel
"""
def main(out):
    a = Asm()
    a.raw("; @launch kernel=k1_kernel grid=(256,1,1) block=(256,1,1) lds=147456")
    a.raw("; @launch kernel=k2_kernel grid=(256,1,1) block=(256,1,1) lds=81920")
    a.raw('.amdgcn_target "amdgcn-amd-amdhsa--gfx950"')
    a.raw(".text")
    gen_K1(a)
    gen_K2(a)
    a.raw('.section .rodata,"a"')
    a.raw(kd("k1_kernel")); a.raw(kd("k2_kernel"))
    open(out, "w").write(a.text())
main(sys.argv[1])
```

```python
import sys, math
from asmlib import *

NAME = "gated_mix__sliding_local_dilated__swiglu_ffn__prompt"
ACT_SIZE = 128*68*1024
W2P_OFF = 0x900000; W2P_SIZE = 8*68*5*1024
G_OFF = 0xC00000; G_SIZE = 8192
TS = 68*1024
import struct
def f2u(x): return struct.unpack("<I", struct.pack("<f", x))[0]
LOG2E = 1.4426950408889634

def srd(a, d, base, size, off=0):
    if off:
        a(f"s_add_u32 s{d}, s{base}, {hex(off)}")
        a(f"s_addc_u32 s{d+1}, s{base+1}, 0")
    else:
        a(f"s_mov_b32 s{d}, s{base}")
        a(f"s_mov_b32 s{d+1}, s{base+1}")
    a(f"s_mov_b32 s{d+2}, {size}")
    a(f"s_mov_b32 s{d+3}, 0x20000")

PROF = "--prof" in sys.argv
PROF_OFF = 0x1000000
class Prof:
    def __init__(self, a, kern): self.a = a; self.k = kern
    def stamp(self, i, real=False):
        if PROF: self.a(f"{'s_memrealtime' if real else 's_memtime'} s[{86+2*i}:{87+2*i}]")
    def finish(self, vt=250):
        if not PROF: return
        a = self.a
        a("s_mov_b64 exec, -1")
        a("s_waitcnt vmcnt(0)")
        self.stamp(6); self.stamp(7, True)
        a("s_waitcnt lgkmcnt(0)")
        a(f"v_mov_b32 v{vt}, 0")
        for i in range(8): a(f"v_writelane_b32 v{vt}, s{86+2*i}, {i}")
        srd(a, 24, 20, 0x100000, PROF_OFF)
        a(f"v_mbcnt_lo_u32_b32 v{vt+1}, -1, 0")
        a(f"v_lshlrev_b32 v{vt+1}, 2, v{vt+1}")
        a(f"s_lshl_b32 s60, s2, 2")
        a(f"s_add_u32 s60, s60, s44")
        a(f"s_add_u32 s60, s60, {self.k*1024}")
        a(f"s_lshl_b32 s60, s60, 5")
        a("s_mov_b64 exec, 0xff")
        a(f"buffer_store_dword v{vt}, v{vt+1}, s[24:27], s60 offen")

class Gaps:
    def __init__(self): self.m = []; self.f = []; self.cost = []
    def add(self, fn): self.m.append(fn); self.f.append([]); self.cost.append(0); return len(self.m)-1
    def put(self, i, fn, cost=1): self.f[i].append(fn); self.cost[i] += cost
    def emit(self):
        for m, fl in zip(self.m, self.f):
            m()
            for f in fl: f()

def voffX_code(a, dst, lane, t0, t1):
    a(f"s_lshl_b32 s52, s44, 2")
    a(f"v_lshrrev_b32 v{t0}, 4, v{lane}")
    a(f"v_add_u32 v{t0}, s52, v{t0}")
    a(f"v_xor_b32 v{t0}, v{t0}, v{lane}")
    a(f"v_and_b32 v{t0}, 7, v{t0}")
    a(f"v_lshlrev_b32 v{t0}, 4, v{t0}")
    a(f"v_lshrrev_b32 v{t1}, 3, v{lane}")
    a(f"v_mul_u32_u24 v{t1}, 1280, v{t1}")
    a(f"v_add_u32 v{dst}, v{t0}, v{t1}")

def prepack_setup(a):
    a("s_lshr_b32 s59, s53, 1")
    a("s_and_b32 s60, s53, 1")
    a("s_lshl_b32 s60, s60, 2")
    a("s_add_u32 s60, s60, s44")
    a("s_sub_u32 s54, s59, 20")
    a("s_lshl_b32 s54, s54, 5")
    a("s_mov_b32 s55, 16\ns_mov_b32 s56, 4\ns_mov_b32 s57, 8")
    a("s_cmp_lt_u32 s59, 20")
    a("s_cselect_b32 s36, s8, s16")
    a("s_cselect_b32 s37, s9, s17")
    a(f"s_mov_b32 s38, {1536*1280}")
    a(f"s_cselect_b32 s38, {640*1280}, s38")
    a("s_mov_b32 s39, 0x20000")
    a("s_mul_i32 s61, s59, 160")
    a(f"s_sub_u32 s61, s61, {160*16-16}")
    a("s_cmp_lt_u32 s59, 20")
    a("s_cselect_b32 s54, s61, s54")
    a("s_cselect_b32 s55, 80, s55")
    a("s_cselect_b32 s56, 40, s56")
    a("s_cselect_b32 s57, 20, s57")
    a("s_mul_i32 s61, s59, 40")
    a("s_cmp_lt_u32 s59, 16")
    a("s_cselect_b32 s54, s61, s54")
    a("s_cselect_b32 s55, 20, s55")
    a("s_cselect_b32 s56, 4, s56")
    a("s_cselect_b32 s57, 8, s57")
    for r in (54, 55, 56, 57): a(f"s_mul_i32 s{r}, s{r}, 1280")
    a("s_mul_i32 s61, s60, 160")
    a("s_add_u32 s54, s54, s61")
    a("s_mul_i32 s58, s60, 68")
    a("s_add_u32 s58, s58, s59")
    a("s_mul_i32 s58, s58, 5120")
    a("s_mul_i32 s62, s44, 8704")
    srd(a, 40, 20, W2P_SIZE, W2P_OFF)

def prepack_ops(a, lane, vdma, vtr, vst, t0, fr):
    addr = []
    def L(s): return lambda: a(s)
    addr += [L(f"v_lshrrev_b32 v{t0}, 4, v{lane}"),
             L(f"v_and_b32 v{vdma}, 15, v{lane}"),
             L(f"v_sub_u32 v{vdma}, v{vdma}, v{t0}"),
             L(f"v_sub_u32 v{vdma}, v{vdma}, v{t0}"),
             L(f"v_cmp_gt_u32 vcc, 10, v{vdma}"),
             L(f"v_lshlrev_b32 v{vdma}, 4, v{vdma}"),
             L(f"v_mul_u32_u24 v{t0}, 1280, v{t0}"),
             L(f"v_add_u32 v{vdma}, v{vdma}, v{t0}"),
             L(f"v_mov_b32 v{t0}, 0x40000000"),
             L(f"v_cndmask_b32 v{vdma}, v{t0}, v{vdma}, vcc"),
             L(f"v_lshrrev_b32 v{t0}, 4, v{lane}"),
             L(f"v_mul_u32_u24 v{vtr}, 2176, v{t0}"),
             L(f"v_bfe_u32 v{t0}, v{lane}, 2, 2"),
             L(f"v_mul_u32_u24 v{t0}, 288, v{t0}"),
             L(f"v_add_u32 v{vtr}, v{vtr}, v{t0}"),
             L(f"v_and_b32 v{t0}, 3, v{lane}"),
             L(f"v_lshlrev_b32 v{t0}, 3, v{t0}"),
             L(f"v_add3_u32 v{vtr}, v{vtr}, v{t0}, s62"),
             L(f"v_lshlrev_b32 v{vst}, 4, v{lane}")]
    dma = []
    for n in range(8):
        q, j = n >> 1, n & 1
        def f(n=n, q=q, j=j):
            a(f"s_add_u32 m0, s62, {n*1088}")
            a("s_mov_b32 s61, s54")
            if q >> 1: a("s_add_u32 s61, s61, s55")
            if q & 1: a("s_add_u32 s61, s61, s56")
            if j: a("s_add_u32 s61, s61, s57")
            a.vmem(f"buffer_load_dwordx4 v{vdma}, s[36:39], s61 offen lds", "pp")
        dma.append(f)
    rd = []
    for jt in range(5):
        for j in range(2):
            def f(jt=jt, j=j):
                a.wait(vm=["pp"])
                a.lds(f"ds_read_b64_tr_b16 {vr(fr+4*jt+2*j,2)}, v{vtr} offset:{j*1088+jt*32}", f"ppr{jt}")
            rd.append(f)
    st = []
    for jt in range(5):
        def f(jt=jt):
            a.wait(lg=[f"ppr{jt}"])
            if jt == 4:
                a("s_add_u32 s58, s58, 4096")
                a.vmem(f"buffer_store_dwordx4 {vr(fr+4*jt,4)}, v{vst}, s[40:43], s58 offen")
            else:
                a.vmem(f"buffer_store_dwordx4 {vr(fr+4*jt,4)}, v{vst}, s[40:43], s58 offen offset:{jt*1024}")
        st.append(f)
    return addr, dma, rd, st

def gen_F(a):
    a.reset_counters()
    LANE = 185; T0, T1 = 186, 187
    XB = 98304
    VX = 176; VW = 180; VOW = 182; VOX = 183; VST = 184
    srd(a, 24, 4, 2048*1280)
    a("s_and_b32 s52, s44, 1")
    a("s_cmp_eq_u32 s52, 0")
    a("s_cselect_b32 s28, s12, s14")
    a("s_cselect_b32 s29, s13, s15")
    a(f"s_mov_b32 s30, {640*3072}")
    a("s_mov_b32 s31, 0x20000")
    voffX_code(a, VOX, LANE, T0, T1)
    a("s_mul_i32 s46, s64, 192")
    a("s_lshl_b32 s52, s44, 3")
    a("s_add_u32 s46, s46, s52")
    a("s_mul_i32 s46, s46, 1280")
    a("s_lshl_b32 s48, s44, 10")
    a(f"s_add_u32 s48, s48, {XB}")
    a("s_and_b32 s52, s44, 1")
    a("s_lshl_b32 s52, s52, 2")
    a(f"v_lshrrev_b32 v{T0}, 4, v{LANE}")
    a(f"v_or_b32 v{T1}, s52, v{T0}")
    a(f"v_lshlrev_b32 v{T1}, 1, v{T1}")
    a(f"v_xor_b32 v{T1}, v{T1}, v{LANE}")
    a(f"v_and_b32 v{T1}, 15, v{T1}")
    a(f"v_lshlrev_b32 v{T1}, 4, v{T1}")
    a(f"v_mul_u32_u24 v{T0}, 3072, v{T0}")
    a(f"v_add_u32 v{VOW}, v{T0}, v{T1}")
    a("s_lshr_b32 s52, s44, 1")
    a(f"s_mul_i32 s45, s52, {4*3072}")
    a("s_lshl_b32 s61, s63, 8")
    a("s_add_u32 s45, s45, s61")
    a(f"s_sub_u32 s45, s45, {8*3072}")
    a("s_lshl_b32 s47, s44, 10")

    def dmaW(p, i):
        def f():
            a(f"s_add_u32 m0, s47, {(p%3)*32768 + i*4096}")
            a(f"s_add_u32 s45, s45, {8*3072}")
            a.vmem(f"buffer_load_dwordx4 v{VOW}, s[28:31], s45 offen lds", ("W", p, i))
        return f
    def dmaX(p, i):
        if p < 10: off = i*40960 + 128*p
        else:
            e = 4*(p-10) + i; off = (4 + e//10)*40960 + (e%10)*128
        def f():
            a(f"s_add_u32 m0, s48, {(p%3)*16384 + i*4096}")
            a(f"s_add_u32 s61, s46, {off}")
            a.vmem(f"buffer_load_dwordx4 v{VOX}, s[24:27], s61 offen lds", ("X", p, i))
        return f
    def dmas(p):
        if p < 10: return [dmaX(p, i) for i in range(4)] + [dmaW(p, i) for i in range(8)]
        if p < 15: return [dmaX(p, i) for i in range(4)]
        return []
    def tags(p):
        return [("X", p, i) for i in range(4)] + [("W", p, i) for i in range(8)]

    d0 = dmas(0)
    for f in d0: f()
    d1 = dmas(1)
    srd(a, 32, 20, ACT_SIZE)
    a("s_lshl_b32 s52, s44, 1")
    a(f"v_bfe_u32 v{T0}, v{LANE}, 2, 3")
    a(f"v_xor_b32 v{T1}, s52, v{T0}")
    a(f"v_lshlrev_b32 v{T1}, 5, v{T1}")
    a(f"v_lshl_add_u32 v{T1}, v{T0}, 8, v{T1}")
    a(f"v_lshrrev_b32 v{T0}, 5, v{LANE}")
    a(f"v_lshl_add_u32 v{T1}, v{T0}, 12, v{T1}")
    a(f"v_and_b32 v{T0}, 3, v{LANE}")
    a(f"v_lshl_add_u32 v{VW}, v{T0}, 3, v{T1}")
    a(f"v_xor_b32 v{VW+1}, 32, v{VW}")
    a(f"v_bfe_u32 v{T0}, v{LANE}, 1, 3")
    a(f"v_lshrrev_b32 v{T1}, 5, v{LANE}")
    a(f"v_xor_b32 v{T0}, v{T0}, v{T1}")
    a(f"v_lshlrev_b32 v{T0}, 4, v{T0}")
    a(f"v_and_b32 v{T1}, 31, v{LANE}")
    a(f"v_lshl_add_u32 v{T0}, v{T1}, 7, v{T0}")
    a(f"v_add_u32 v{VX}, {XB}, v{T0}")
    for s in range(1, 4): a(f"v_xor_b32 v{VX+s}, {s<<5}, v{VX}")
    a(f"v_bfe_u32 v{T0}, v{LANE}, 4, 1")
    a(f"v_mul_u32_u24 v{T0}, {TS}, v{T0}")
    a(f"v_lshrrev_b32 v{T1}, 5, v{LANE}")
    a(f"v_lshl_add_u32 v{T0}, v{T1}, 8, v{T0}")
    a(f"v_and_b32 v{T1}, 15, v{LANE}")
    a(f"v_lshl_add_u32 v{VST}, v{T1}, 4, v{T0}")
    a(f"s_mul_i32 s49, s64, {12*TS}")
    a("s_lshl_b32 s52, s63, 2")
    a("s_add_u32 s52, s52, s44")
    a("s_add_u32 s52, s52, 20")
    a("s_lshl_b32 s52, s52, 10")
    a("s_add_u32 s49, s49, s52")
    a(f"s_mov_b32 s50, {hex(f2u(-LOG2E))}")
    a("s_mul_i32 s53, s64, 12")
    a("s_add_u32 s53, s53, s63")
    prepack_setup(a)
    for f in d1[:6]: f()

    def Wreg(t, u):
        return R("a", 8*t + 4*u) if t < 32 else R("v", 192 + 8*(t-32) + 4*u)
    def XA(t, c): return R("v", 128 + 16*(t & 1) + 4*c)
    def XBr(t): return R("v", 160 + 4*(t & 3))
    def rdW(t, u, j):
        def f():
            a.lds(f"ds_read_b64_tr_b16 {Wreg(t,u)(2, 2*j)}, v{VW+u} offset:{(t%4)*8192 + j*2048}", ("w", t, u))
        return f
    def rdXA(t, c):
        p = t // 4
        def f():
            a.lds(f"ds_read_b128 {XA(t,c)(4)}, v{VX + t%4} offset:{(p%3)*16384 + c*4096}", ("x", t, c))
        return f
    def rdXB(t):
        e = (t-40)//4; p = 10 + e//4; i = e % 4
        def f():
            a.lds(f"ds_read_b128 {XBr(t)(4)}, v{VX + t%4} offset:{(p%3)*16384 + i*4096}", ("x", t, 0))
        return f
    def readsA(t):
        return [rdW(t,0,0), rdW(t,0,1), rdXA(t,0), rdW(t,1,0), rdW(t,1,1), rdXA(t,1), rdXA(t,2), rdXA(t,3)]
    def barrier(vmtags):
        def f():
            a.wait(vm=vmtags, lg_all=True)
            a("s_barrier")
        return f
    def wslot_adv(p):
        d = 32768 if p % 3 else -65536
        def f():
            for u in range(2):
                if d > 0: a(f"v_add_u32 v{VW+u}, {d}, v{VW+u}")
                else: a(f"v_subrev_u32 v{VW+u}, {-d}, v{VW+u}")
        return f

    barrier([("X",0,i) for i in range(4)] + [("W",0,0),("W",0,1)])()
    a.P.stamp(2)
    for f in readsA(0): f()

    G = Gaps()
    def mf(acc, w, x, first, need):
        def f():
            a.wait(lg=need)
            c = "0" if first else vr(acc,16)
            a(f"v_mfma_f32_32x32x16_bf16 {vr(acc,16)}, {w(4)}, {x(4)}, {c}")
        return f
    idx = {}
    for t in range(40):
        for c in range(4):
            for u in range(2):
                idx[(t,c,u)] = G.add(mf(32*c+16*u, Wreg(t,u), XA(t,c), t == 0, [("w",t,u),("x",t,c)]))
    for t in range(40, 120):
        k = (t-40) % 40
        acc = 128 if t < 80 else 0
        for u in range(2):
            idx[(t,0,u)] = G.add(mf(acc+16*u, Wreg(k,u), XBr(t), k == 0, [("x",t,0)]))
    for t in range(40):
        g0 = idx[(t,0,0)]
        nxt = t+1
        if nxt < 40: rds = readsA(nxt)
        else: rds = [rdXB(40), rdXB(41), rdXB(42)]
        needbar = (nxt % 4 == 0) or nxt < 4
        if needbar:
            if nxt < 4: vt = [("W",0,2*nxt),("W",0,2*nxt+1)]
            else: vt = tags(nxt//4)
            G.put(g0+1, barrier(vt), 2)
            if nxt % 4 == 0 and nxt < 40: G.put(g0+1, wslot_adv(nxt//4), 2)
            pos = [1,1,2,2,3,4,5,6]
        else:
            pos = [0,0,1,2,3,4,5,6]
        for f, o in zip(rds, pos): G.put(g0+o, f)
    for t in range(40, 117):
        g0 = idx[(t,0,0)]
        nxt = t+3
        if (nxt-40) % 16 == 0:
            G.put(g0, barrier(tags(10 + (nxt-40)//16)), 2)
        G.put(g0, rdXB(nxt))
    def barpos(q):
        if q <= 10: return idx[(4*q-1,0,0)] + 1
        return idx[(40 + 16*(q-10) - 3, 0, 0)]
    def spread(fs, lo, hi, cost):
        n = len(fs)
        for i, f in enumerate(fs):
            G.put(lo + (hi-lo)*i//n, f, cost)
    spread(d1[6:] + dmas(2), 0, barpos(1), 3)
    for p in range(3, 15):
        spread(dmas(p), barpos(p-2)+1, barpos(p-1), 3)
    def epi(acc, ch, u):
        ops = []
        def L(s): return (lambda: a(s), 1)
        def T(s): return (lambda: a(s), 2)
        for r in range(8): ops.append(L(f"v_mul_f32 v{acc+8+r}, v{acc+r}, v{acc+8+r}"))
        for r in range(8): ops.append(L(f"v_mul_f32 v{acc+r}, s50, v{acc+r}"))
        ops2 = []
        for r in range(8): ops2.append(T(f"v_exp_f32 v{acc+r}, v{acc+r}"))
        for r in range(8): ops2.append(L(f"v_add_f32 v{acc+r}, 1.0, v{acc+r}"))
        for r in range(8): ops2.append(T(f"v_rcp_f32 v{acc+r}, v{acc+r}"))
        for r in range(8): ops2.append(L(f"v_mul_f32 v{acc+8+r}, v{acc+r}, v{acc+8+r}"))
        for r in range(4): ops2.append(L(f"v_cvt_pk_bf16_f32 v{acc+r}, v{acc+8+2*r}, v{acc+9+2*r}"))
        def st():
            a(f"s_add_u32 s61, s49, {ch*2*TS}")
            a.vmem(f"buffer_store_dwordx4 {vr(acc,4)}, v{VST}, s[32:35], s61 offen offset:{u*512}")
        ops2.append((st, 2))
        return ops + ops2
    BUD = 6
    def fill(ops, start):
        g = start
        for f, c in ops:
            while g < len(G.m)-1 and G.cost[g] + c > BUD: g += 1
            G.put(g, f, c)
        return g
    gB1 = idx[(40,0,0)]; gB2 = idx[(80,0,0)]
    pa, pd, pr, ps = prepack_ops(a, LANE, VOW, T1, 188, T0, 32)
    g = fill([(f,1) for f in pa], gB1)
    g = fill([(f,4) for f in pd], g)
    g = gB1 + 4
    for ch in range(4):
        for u in range(2):
            g = fill(epi(32*ch+16*u, ch, u), g)
            if ch == 0: assert g < gB2 - 4
            if ch == 1: gch1 = g
    g = max(g, gB2 + 4)
    for u in range(2): g = fill(epi(128+16*u, 4, u), g)
    g2 = fill([(f,1) for f in pr], max(gch1+2, g-30))
    g2 = fill([(f,2) for f in ps], g2+3)
    print("F: epilogue ends at gap", g, g2, "of", len(G.m), file=sys.stderr)
    G.put(gB1-1, lambda: a.P.stamp(3)); G.put(gB2-1, lambda: a.P.stamp(4))
    G.emit()
    a.P.stamp(5)
    a("s_nop 7\ns_nop 3")
    e0 = epi(0, 5, 0); e1 = epi(16, 5, 1)
    for (f0,_), (f1,_) in zip(e0, e1): f0(); f1()
    a.P.finish()
    a("s_endpgm")

def gen_spare(a):
    a.reset_counters()
    LANE = 185
    a("s_add_u32 s53, s3, 132")
    prepack_setup(a)
    pa, pd, pr, ps = prepack_ops(a, LANE, 182, 187, 188, 186, 32)
    for f in pa + pd + pr + ps: f()
    a.P.finish()
    a("s_endpgm")

def gen_Q(a):
    a.reset_counters()
    LANE = 255; T0, T1 = 254, 253
    a(f"v_mov_b32 v{LANE}, v185")
    WS = 17920; XB = 4*WS; XS = 20480
    VX = 232; VW1 = 234; VW3 = 235; VW4 = 236; VOW = 237; VOX = 238
    srd(a, 24, 4, 2048*1280)
    srd(a, 28, 6, 640*3840)
    voffX_code(a, VOX, LANE, T0, T1)
    a("s_mul_i32 s46, s64, 144")
    a("s_lshl_b32 s52, s44, 3")
    a("s_add_u32 s46, s46, s52")
    a("s_sub_u32 s46, s46, 16")
    a("s_mul_i32 s46, s46, 1280")
    a("s_max_i32 s65, s46, 0")
    a("s_lshl_b32 s48, s44, 10")
    a(f"s_add_u32 s48, s48, {XB}")
    a(f"v_subrev_u32 v{T0}, 34, v{LANE}")
    a(f"v_cmp_lt_u32 vcc, 31, v{LANE}")
    a(f"v_mov_b32 v{T1}, 3840")
    a("s_nop 0")
    a(f"v_cndmask_b32 v{T0}, v{LANE}, v{T0}, vcc")
    a(f"v_cndmask_b32 v{VOW}, 0, v{T1}, vcc")
    a(f"v_mul_u32_u24 v{T1}, 205, v{T0}")
    a(f"v_lshrrev_b32 v{T1}, 11, v{T1}")
    a(f"v_mul_u32_u24 v{T1}, {1280-160}, v{T1}")
    a(f"v_add_u32 v{VOW}, v{VOW}, v{T1}")
    a(f"v_lshl_add_u32 v{VOW}, v{T0}, 4, v{VOW}")
    a(f"v_cmp_gt_u32 vcc, 30, v{T0}")
    a(f"v_mov_b32 v{T1}, 0x40000000")
    a(f"s_mul_i32 s45, s44, {2*3840}")
    a(f"v_cndmask_b32 v{VOW}, v{T1}, v{VOW}, vcc")
    a("s_mul_i32 s52, s63, 160")
    a("s_add_u32 s45, s45, s52")
    a(f"s_sub_u32 s45, s45, {8*3840}")
    a("s_mul_i32 s47, s44, 1088")
    def dmaW(t, i):
        def f():
            a(f"s_add_u32 m0, s47, {(t%4)*WS + i*4480}")
            a(f"s_add_u32 s45, s45, {8*3840}")
            a.vmem(f"buffer_load_dwordx4 v{VOW}, s[28:31], s45 offen lds", ("W", t))
        return f
    def dmaX(p, i):
        def f():
            a(f"s_add_u32 m0, s48, {(p%3)*XS + i*4096}")
            a(f"s_add_u32 s61, {'s65' if i == 0 else 's46'}, {i*40960 + 128*p}")
            a.vmem(f"buffer_load_dwordx4 v{VOX}, s[24:27], s61 offen lds", ("X", p))
        return f
    dW = lambda t: [dmaW(t, i) for i in range(4)] if t < 20 else []
    dX = lambda p: [dmaX(p, i) for i in range(5)] if p < 10 else []
    for f in dW(0) + dX(0) + dW(1): f()
    srd(a, 32, 20, ACT_SIZE)
    srd(a, 36, 18, 1280)
    srd(a, 40, 20, G_SIZE, G_OFF)
    a(f"v_bfe_u32 v{T0}, v{LANE}, 1, 3")
    a(f"v_lshrrev_b32 v{T1}, 4, v{LANE}")
    a(f"v_xor_b32 v{T0}, v{T0}, v{T1}")
    a(f"v_lshlrev_b32 v{T0}, 4, v{T0}")
    a(f"v_and_b32 v{T1}, 15, v{LANE}")
    a(f"v_lshl_add_u32 v{T0}, v{T1}, 7, v{T0}")
    a(f"v_add_u32 v{VX}, {XB}, v{T0}")
    a(f"v_xor_b32 v{VX+1}, 64, v{VX}")
    a(f"v_lshrrev_b32 v{T0}, 4, v{LANE}")
    a(f"v_mul_u32_u24 v{T0}, 4480, v{T0}")
    a(f"v_bfe_u32 v{T1}, v{LANE}, 2, 2")
    a(f"v_mul_u32_u24 v{T1}, 544, v{T1}")
    a("s_mul_i32 s52, s44, 40")
    a(f"v_add3_u32 v{T0}, v{T0}, v{T1}, s52")
    a(f"v_and_b32 v{T1}, 3, v{LANE}")
    a(f"v_lshl_add_u32 v{VW1}, v{T1}, 3, v{T0}")
    a(f"v_add_u32 v{VW3}, 320, v{VW1}")
    a(f"v_add_u32 v{VW4}, 32, v{T0}")
    a(f"v_cmp_eq_u32 vcc, 0, v{T1}")
    a("s_nop 1")
    a(f"v_cndmask_b32 v{VW3}, v{VW3}, v{VW4}, vcc")
    a(f"v_add_u32 v{VW4}, 192, v{T0}")
    a(f"v_add_u32 v252, 320, v{T0}")
    a(f"v_cmp_eq_u32 vcc, 1, v{T1}")
    a("s_nop 1")
    a(f"v_cndmask_b32 v{VW4}, v{VW4}, v252, vcc")
    a(f"v_add_u32 v252, 352, v{T0}")
    a(f"v_cmp_eq_u32 vcc, 2, v{T1}")
    a("s_nop 1")
    a(f"v_cndmask_b32 v{VW4}, v{VW4}, v252, vcc")
    for f in dW(2): f()

    ORD = [3, 4, 2, 1]
    def Wf(t, o): return R("a", 80 + 16*(t&1) + 4*o)
    def Xf(t, tile): return R("a", 40*(t&1) + 4*tile)
    def rdW(t, o, j):
        T = ORD[o]
        reg = {1: VW1, 2: VW1, 3: VW3, 4: VW4}[T]
        off = (t%4)*WS + j*2176 + (160 if T == 2 else 0)
        return lambda: a.lds(f"ds_read_b64_tr_b16 {Wf(t,o)(2,2*j)}, v{reg} offset:{off}", ("w",t,o))
    def rdX(t, tile):
        p = t//2
        return lambda: a.lds(f"ds_read_b128 {Xf(t,tile)(4)}, v{VX + t%2} offset:{(p%3)*XS + tile*2048}", ("x",t,tile))
    def reads(t):
        r = [rdW(t,0,0), rdW(t,0,1), rdX(t,0)]
        for o in range(1,4): r += [rdW(t,o,0), rdW(t,o,1)]
        return r + [rdX(t,tile) for tile in range(1,10)]
    def barrier(vmtags):
        def f():
            a.wait(vm=vmtags, lg_all=True)
            a("s_barrier")
        return f
    barrier([("W",0),("X",0)])()
    a.P.stamp(2)
    for f in reads(0): f()
    G = Gaps()
    start = {}
    for t in range(20):
        for tile in range(10):
            for o in range(4):
                if tile == 0 and o == 3: continue
                def f(t=t, tile=tile, o=o):
                    a.wait(lg=[("w",t,o),("x",t,tile)])
                    acc = 16*tile + 4*o
                    c = "0" if t == 0 else vr(acc,4)
                    a(f"v_mfma_f32_16x16x32_bf16 {vr(acc,4)}, {Wf(t,o)(4)}, {Xf(t,tile)(4)}, {c}")
                i = G.add(f)
                if tile == 0 and o == 0: start[t] = i
    ZX = 160; ZG = 200
    def zaddr():
        a(f"v_lshrrev_b32 v{T0}, 4, v{LANE}")
        a(f"v_mul_u32_u24 v{T0}, 1280, v{T0}")
        a(f"v_and_b32 v{T1}, 15, v{LANE}")
        a(f"v_lshlrev_b32 v{T1}, 4, v{T1}")
        a(f"v_add_u32 v{T0}, v{T0}, v{T1}")
        a("s_lshl_b32 s66, s64, 3")
        a("s_add_u32 s66, s66, s63")
        a("s_lshl_b32 s66, s66, 2")
        a("s_add_u32 s66, s66, s44")
        a("s_lshl_b32 s66, s66, 3")
        a("s_mul_i32 s67, s66, 1280")
        a("s_add_u32 s68, s67, 5120")
    zl = []
    for i in range(5):
        zl.append(lambda i=i: a.vmem(f"buffer_load_dwordx4 {vr(ZG+4*i,4)}, v{T1}, s[36:39], 0 offen offset:{256*i}", "z"))
    for ps_ in range(2):
        for i in range(5):
            zl.append(lambda i=i, ps_=ps_: a.vmem(f"buffer_load_dwordx4 {vr(ZX+20*ps_+4*i,4)}, v{T0}, s[24:27], s{67+ps_} offen offset:{256*i}", "z"))
    for t in range(20):
        g0 = start[t]
        dm = []
        if t+1 < 20:
            G.put(g0+2, barrier([("W",t+1),("X",(t+1)//2)]))
            for i, f in enumerate(reads(t+1)): G.put(g0+3+2*i, f)
        if t == 0: dm = dX(1) + dW(3) + dW(4) + dX(2)[:2]
        elif t == 1: dm = dX(2)[2:] + dW(5) + dX(3)[:3]
        else:
            dm = dW(t+4)
            if t % 2 == 1: dm += dX((t-1)//2+3)[:3]
            else: dm += dX((t-2)//2+3)[3:]
        if t == 16: dm = dm + [zaddr] + zl[:5]
        if t == 17: dm = dm + zl[5:]
        for i, f in enumerate(dm): G.put(g0 + 4 + (34*i)//len(dm), f)
    G.put(start[10], lambda: a.P.stamp(3))
    G.emit()
    a.P.stamp(4)
    a("s_barrier")
    a.wait(vm=["z"])
    for ps_ in range(2):
        for i in range(20):
            c = "0" if i == 0 else f"v{220+ps_}"
            a(f"v_dot2_f32_bf16 v{220+ps_}, v{ZX+20*ps_+i}, v{ZG+i}, {c}")
    a("s_nop 3")
    for sh in (8,4,2,1):
        for ps_ in range(2):
            a(f"v_add_f32_dpp v{220+ps_}, v{220+ps_}, v{220+ps_} row_ror:{sh} row_mask:0xf bank_mask:0xf")
        a("s_nop 1")
    a(f"s_mov_b32 s50, {hex(f2u(-LOG2E))}")
    for op in ["v_mul_f32 {0}, s50, {0}", "v_exp_f32 {0}, {0}", "v_add_f32 {0}, 1.0, {0}", "v_rcp_f32 {0}, {0}"]:
        for ps_ in range(2): a(op.format(f"v{220+ps_}"))
    a(f"v_lshrrev_b32 v{T0}, 4, v{LANE}")
    a(f"v_lshlrev_b32 v{T0}, 2, v{T0}")
    a("s_lshl_b32 s67, s66, 2")
    a.vmem(f"buffer_store_dword v220, v{T0}, s[40:43], s67 offen")
    a.vmem(f"buffer_store_dword v221, v{T0}, s[40:43], s67 offen offset:16")
    a.P.stamp(5)
    def setmask(s, fn):
        m = 0
        for l in range(64):
            if fn(l): m |= 1 << l
        a(f"s_mov_b32 s{s}, {hex(m & 0xffffffff)}")
        a(f"s_mov_b32 s{s+1}, {hex(m >> 32)}")
    PAR, IP0, IP1, G0, F0, F1 = 70, 72, 74, 76, 78, 80
    setmask(PAR, lambda l: l & 1)
    isprev = lambda l, j: 4*(l>>4) + 2*j + (l&1) > (l&15)
    setmask(IP0, lambda l: isprev(l,0))
    setmask(IP1, lambda l: isprev(l,1))
    setmask(G0, lambda l: l < 16)
    a("s_cmp_eq_u32 s64, 0")
    a(f"s_cselect_b64 s[{F0}:{F0+1}], s[{IP0}:{IP0+1}], 0")
    a(f"s_cselect_b64 s[{F1}:{F1+1}], s[{IP1}:{IP1+1}], 0")
    MP = 240
    NEG = 244; VWR = 245; VRM = 246; VRX = 247; VSO = 248; VSX = 249
    a(f"v_mov_b32 v{T0}, 0xffff")
    a(f"v_mov_b32 v{T1}, 0xffff0000")
    a(f"v_cndmask_b32 v{T0}, v{T0}, v{T1}, s[{PAR}:{PAR+1}]")
    for j, ip in enumerate((IP0, IP1)):
        a(f"v_cndmask_b32 v{MP+j}, 0, v{T0}, s[{ip}:{ip+1}]")
        a(f"v_cndmask_b32 v{MP+2+j}, v{T0}, 0, s[{ip}:{ip+1}]")
    a(f"v_mov_b32 v{NEG}, {hex(f2u(-1e30))}")
    a("s_mul_i32 s52, s44, 10240")
    a(f"v_and_b32 v{T0}, 15, v{LANE}")
    a(f"v_lshlrev_b32 v{T0}, 6, v{T0}")
    a(f"v_lshrrev_b32 v{T1}, 4, v{LANE}")
    a(f"v_lshlrev_b32 v{T1}, 4, v{T1}")
    a(f"v_add3_u32 v{VWR}, v{T0}, v{T1}, s52")
    a(f"v_lshrrev_b32 v{T0}, 2, v{LANE}")
    a(f"v_lshlrev_b32 v{T0}, 6, v{T0}")
    a(f"v_add_u32 v{T0}, s52, v{T0}")
    a(f"v_add_u32 v{VRX}, 40, v{T0}")
    a(f"v_and_b32 v{T1}, 3, v{LANE}")
    a(f"v_cmp_eq_u32 vcc, 0, v{T1}")
    a(f"v_lshlrev_b32 v{T1}, 4, v{T1}")
    a("s_nop 0")
    a(f"v_cndmask_b32 v{T1}, v{T1}, 24, vcc")
    a(f"v_add_u32 v{VRM}, v{T0}, v{T1}")
    a(f"v_lshrrev_b32 v{T0}, 5, v{LANE}")
    a(f"v_mul_u32_u24 v{T0}, {TS}, v{T0}")
    a(f"v_and_b32 v{T1}, 31, v{LANE}")
    a(f"v_lshl_add_u32 v{VSO}, v{T1}, 4, v{T0}")
    a(f"v_and_b32 v{T1}, 15, v{LANE}")
    a(f"v_lshlrev_b32 v{VSX}, 3, v{T1}")
    a(f"s_mul_i32 s82, s64, {9*TS}")
    a("s_lshl_b32 s52, s63, 11")
    a("s_lshl_b32 s61, s44, 9")
    a("s_add_u32 s83, s82, s52")
    a("s_add_u32 s83, s83, s61")
    a("s_lshl_b32 s52, s63, 2")
    a("s_add_u32 s52, s52, s44")
    a("s_lshl_b32 s52, s52, 7")
    a("s_add_u32 s84, s82, s52")
    a(f"s_add_u32 s84, s84, {16*1024}")
    a(f"s_mov_b32 s85, {hex(f2u(LOG2E * 20**-0.5))}")
    B = lambda t: 16*t
    SR = lambda t: 160 + 8*(t-1)
    for t in range(10):
        b = B(t)
        for i in range(6):
            a(f"v_cvt_pk_bf16_f32 v{b+i}, v{b+2*i}, v{b+2*i+1}")
        a.lds(f"ds_write_b128 v{VWR}, {vr(b,4)} offset:{t*1024}", ("vw",t))
        if t > 0:
            a(f"v_cndmask_b32 v{b+6}, 0, v{b}, s[{G0}:{G0+1}]")
            a(f"v_cndmask_b32 v{b+7}, 0, v{b+1}, s[{G0}:{G0+1}]")
            a(f"v_cvt_pk_bf16_f32 v{b+8}, v{b+12}, v{b+13}")
            a(f"v_cvt_pk_bf16_f32 v{b+9}, v{b+14}, v{b+15}")
    a("s_nop 1")
    for t in range(1, 10):
        a(f"v_mfma_f32_16x16x32_bf16 {vr(SR(t),4)}, {vr(B(t-1)+2,4)}, {vr(B(t)+6,4)}, 0")
        a(f"v_mfma_f32_16x16x32_bf16 {vr(SR(t)+4,4)}, {vr(B(t)+2,4)}, {vr(B(t)+6,4)}, 0")
    for t in range(10):
        a.lds(f"ds_read_b64_tr_b16 {vr(2*t,2,'a')}, v{VRM} offset:{t*1024}", ("vr",t))
        a.lds(f"ds_read_b64_tr_b16 {vr(20+2*t,2,'a')}, v{VRX} offset:{t*1024}", ("vr",t))
    TT = range(1, 10)
    def each(fmt):
        for t in TT:
            b = B(t); s = SR(t)
            a(fmt.format(**{f"b{i}": f"v{b+i}" for i in range(16)}, **{f"s{i}": f"v{s+i}" for i in range(8)}))
    par = f"s[{PAR}:{PAR+1}]"
    each("v_cndmask_b32 {b12}, {s0}, {s1}, " + par)
    each("v_cndmask_b32 {b13}, {s4}, {s5}, " + par)
    each("v_cndmask_b32 {b14}, {s2}, {s3}, " + par)
    each("v_cndmask_b32 {b15}, {s6}, {s7}, " + par)
    each("v_cndmask_b32 {b10}, {b13}, {b12}, " + f"s[{IP0}:{IP0+1}]")
    each("v_cndmask_b32 {b11}, {b15}, {b14}, " + f"s[{IP1}:{IP1+1}]")
    a(f"v_cndmask_b32 v{B(1)+10}, v{B(1)+10}, v{NEG}, s[{F0}:{F0+1}]")
    a(f"v_cndmask_b32 v{B(1)+11}, v{B(1)+11}, v{NEG}, s[{F1}:{F1+1}]")
    def xreduce(op):
        for sw in ("v_permlane32_swap_b32", "v_permlane16_swap_b32"):
            each("v_mov_b32 {b13}, {b12}")
            each(sw + " {b12}, {b13}")
            each(op + " {b12}, {b12}, {b13}")
    each("v_max_f32 {b12}, {b10}, {b11}")
    xreduce("v_max_f32")
    each("v_mul_f32 {b12}, s85, {b12}")
    each("v_fma_f32 {b10}, {b10}, s85, -{b12}")
    each("v_fma_f32 {b11}, {b11}, s85, -{b12}")
    each("v_exp_f32 {b10}, {b10}")
    each("v_exp_f32 {b11}, {b11}")
    each("v_add_f32 {b12}, {b10}, {b11}")
    xreduce("v_add_f32")
    each("v_rcp_f32 {b12}, {b12}")
    each("v_mul_f32 {b10}, {b10}, {b12}")
    each("v_mul_f32 {b11}, {b11}, {b12}")
    each("v_cvt_pk_bf16_f32 {b10}, {b10}, {b10}")
    each("v_cvt_pk_bf16_f32 {b11}, {b11}, {b11}")
    each("v_and_b32 {s0}, {b10}, " + f"v{MP}")
    each("v_and_b32 {s1}, {b11}, " + f"v{MP+1}")
    each("v_and_b32 {s2}, {b10}, " + f"v{MP+2}")
    each("v_and_b32 {s3}, {b11}, " + f"v{MP+3}")
    a.wait(lg_all=True)
    a("s_nop 1")
    for t in TT:
        a(f"v_mfma_f32_16x16x32_bf16 {vr(SR(t)+4,4)}, {vr(2*(t-1),4,'a')}, {vr(SR(t),4)}, 0")
        a(f"v_mfma_f32_16x16x32_bf16 {vr(B(t)+12,4)}, {vr(20+2*(t-1),4,'a')}, {vr(SR(t),4)}, 0")
    a("s_nop 7")
    for t in TT:
        d = B(t) if t % 2 == 1 else B(t-1) + 2
        a(f"v_cvt_pk_bf16_f32 v{d}, v{SR(t)+4}, v{SR(t)+5}")
        a(f"v_cvt_pk_bf16_f32 v{d+1}, v{SR(t)+6}, v{SR(t)+7}")
        a(f"v_cvt_pk_bf16_f32 v{B(t)+10}, v{B(t)+12}, v{B(t)+13}")
        a(f"v_cvt_pk_bf16_f32 v{B(t)+11}, v{B(t)+14}, v{B(t)+15}")
    a("s_nop 1")
    for t in (1,3,5,7,9):
        a(f"v_permlane32_swap_b32 v{B(t)}, v{B(t)+2}")
        a(f"v_permlane32_swap_b32 v{B(t)+1}, v{B(t)+3}")
    for t in TT:
        a(f"s_add_u32 s61, s84, {(t-1)*TS}")
        a.vmem(f"buffer_store_dwordx2 {vr(B(t)+10,2)}, v{VSX}, s[32:35], s61 offen")
    for t in (1,3,5,7,9):
        a(f"s_add_u32 s61, s83, {(t-1)*TS}")
        if t == 9: a("s_mov_b32 exec_hi, 0")
        a.vmem(f"buffer_store_dwordx4 {vr(B(t),4)}, v{VSO}, s[32:35], s61 offen")
    a.P.finish()
    a("s_endpgm")

def gen_K1(a):
    a.raw(".p2align 8")
    a.raw(".globl k1_kernel\n.type k1_kernel,@function")
    a.label("k1_kernel")
    a("s_cmp_ge_u32 s2, 256")
    a("s_cbranch_scc1 L_k1_exit")
    P = Prof(a, 0); a.P = P
    P.stamp(0, True); P.stamp(1)
    a("s_load_dwordx16 s[4:19], s[0:1], 0")
    a("s_load_dwordx2 s[20:21], s[0:1], 80")
    a("v_lshrrev_b32 v1, 6, v0")
    a("v_and_b32 v185, 63, v0")
    a("s_and_b32 s3, s2, 7")
    a("v_readfirstlane_b32 s44, v1")
    a("s_lshr_b32 s22, s2, 3")
    a("s_and_b32 s23, s3, 1")
    a("s_lshr_b32 s3, s3, 1")
    a("s_mul_i32 s51, s23, 3")
    a("s_sub_u32 s51, 18, s51")
    a("s_cmp_lt_u32 s22, s51")
    a("s_cbranch_scc0 L_k1_notF")
    a("s_mul_i32 s64, s22, 43")
    a("s_lshr_b32 s64, s64, 7")
    a("s_mul_i32 s52, s64, 3")
    a("s_sub_u32 s63, s22, s52")
    a("s_mul_i32 s52, s3, 3")
    a("s_add_u32 s63, s63, s52")
    a("s_mul_i32 s52, s23, 6")
    a("s_add_u32 s64, s64, s52")
    a("s_waitcnt lgkmcnt(0)")
    gen_F(a)
    a.label("L_k1_notF")
    a("s_sub_u32 s22, s22, s51")
    a("s_and_b32 s63, s22, 1")
    a("s_lshl_b32 s52, s3, 1")
    a("s_add_u32 s63, s63, s52")
    a("s_lshr_b32 s64, s22, 1")
    a("s_mul_i32 s52, s23, 7")
    a("s_add_u32 s64, s64, s52")
    a("s_waitcnt lgkmcnt(0)")
    a("s_cmp_ge_u32 s64, 15")
    a("s_cbranch_scc1 L_k1_spare")
    gen_Q(a)
    a.label("L_k1_spare")
    gen_spare(a)
    a.label("L_k1_exit")
    a("s_endpgm")

def gen_K2(a):
    a.reset_counters()
    a.raw(".p2align 8")
    a.raw(".globl k2_kernel\n.type k2_kernel,@function")
    a.label("k2_kernel")
    a("s_cmp_ge_u32 s2, 256")
    a("s_cbranch_scc1 L_k2_exit")
    P = Prof(a, 1); a.P = P
    P.stamp(0, True); P.stamp(1)
    a("s_load_dwordx2 s[20:21], s[0:1], 80")
    a("s_load_dwordx2 s[18:19], s[0:1], 64")
    LANE = 160; VT = 164; VA = 168; VB = 169; VE = 172; GR = 176; T0 = 161; T1 = 162
    a("v_lshrrev_b32 v1, 6, v0")
    a(f"v_and_b32 v{LANE}, 63, v0")
    a("s_and_b32 s3, s2, 7")
    a("v_readfirstlane_b32 s44, v1")
    a("s_lshl_b32 s3, s3, 2")
    a("s_bfe_u32 s22, s2, 0x20003")
    a("s_add_u32 s3, s3, s22")
    a("s_lshr_b32 s22, s2, 5")
    a(f"v_lshlrev_b32 v{VA}, 4, v{LANE}")
    a(f"v_add_u32 v{VB}, 4096, v{VA}")
    for T in range(4): a(f"v_add_u32 v{VT+T}, {T*TS}, v{VA}")
    a(f"v_lshrrev_b32 v{T0}, 4, v{LANE}")
    a(f"v_lshlrev_b32 v{T0}, 8, v{T0}")
    a(f"v_and_b32 v{T1}, 15, v{LANE}")
    a(f"v_lshl_add_u32 v{T0}, v{T1}, 3, v{T0}")
    for T in range(4): a(f"v_add_u32 v{VE+T}, {T*TS}, v{T0}")
    a(f"s_mul_i32 s45, s3, {4*TS}")
    a(f"s_mul_i32 s46, s22, {68*5120}")
    a("s_lshl_b32 s47, s44, 2")
    a("s_add_u32 s48, s44, 16")
    a("s_mul_i32 s49, s44, 12")
    a("s_add_u32 s49, s49, 20")
    for i, r in enumerate((47, 48, 49)):
        a(f"s_lshl_b32 s{50+i}, s{r}, 10")
        a(f"s_add_u32 s{50+i}, s{50+i}, s45")
        a(f"s_mul_i32 s{53+i}, s{r}, 5120")
        a(f"s_add_u32 s{53+i}, s{53+i}, s46")
    a("s_waitcnt lgkmcnt(0)")
    srd(a, 24, 20, ACT_SIZE)
    srd(a, 28, 20, W2P_SIZE, W2P_OFF)
    srd(a, 32, 20, G_SIZE, G_OFF)
    srd(a, 36, 18, 2048*1280)
    steps = [(0,i) for i in range(4)] + [(1,0)] + [(2,i) for i in range(12)]
    NB = 5
    def buf(st): return 36*(st % NB)
    def loads(st):
        kind, i = steps[st]
        b = buf(st)
        ops = []
        def pre():
            a(f"s_add_u32 s60, s{50+kind}, {i*1024}")
            a(f"s_add_u32 s61, s{53+kind}, {i*5120}")
        first = True
        order = [("w",0),("a",0),("w",1),("w",2),("w",3),("w",4),("a",1),("a",2),("a",3)]
        for ty, n in order:
            def f(ty=ty, n=n, first=first):
                if first: pre()
                if ty == "w":
                    if n < 4: a.vmem(f"buffer_load_dwordx4 {vr(b+16+4*n,4,'a')}, v{VA}, s[28:31], s61 offen offset:{n*1024}", (st,ty,n))
                    else: a.vmem(f"buffer_load_dwordx4 {vr(b+16+4*n,4,'a')}, v{VB}, s[28:31], s61 offen", (st,ty,n))
                elif kind == 1:
                    a.vmem(f"buffer_load_dwordx2 {vr(b+4*n,2,'a')}, v{VE+n}, s[24:27], s60 offen", (st,ty,n))
                    a.vmem(f"buffer_load_dwordx2 {vr(b+4*n+2,2,'a')}, v{VE+n}, s[24:27], s60 offen offset:128", (st,ty,n))
                else:
                    a.vmem(f"buffer_load_dwordx4 {vr(b+4*n,4,'a')}, v{VT+n}, s[24:27], s60 offen", (st,ty,n))
            ops.append(f); first = False
        return ops
    PF = NB - 1
    for st in range(PF):
        for f in loads(st): f()
    a(f"v_and_b32 v{T0}, 15, v{LANE}")
    a(f"v_lshlrev_b32 v{T0}, 2, v{T0}")
    a("s_lshl_b32 s62, s3, 8")
    for T in range(4):
        a.vmem(f"buffer_load_dword v{GR+T}, v{T0}, s[32:35], s62 offen offset:{T*64}", "g")
    G = Gaps()
    for st in range(17):
        b = buf(st); kind, i = steps[st]
        accb = 0 if kind < 2 else 80
        first = st == 0 or st == 5
        g0 = None
        for T in range(4):
            for jt in range(5):
                def f(st=st, T=T, jt=jt, b=b, accb=accb, first=first):
                    a.wait(vm=[(st,"w",jt),(st,"a",T)])
                    acc = accb + 4*(5*T+jt)
                    c = "0" if first else vr(acc,4)
                    a(f"v_mfma_f32_16x16x32_bf16 {vr(acc,4)}, {vr(b+16+4*jt,4,'a')}, {vr(b+4*T,4,'a')}, {c}")
                gi = G.add(f)
                if g0 is None: g0 = gi
        if st + PF < 17:
            for n, f in enumerate(loads(st+PF)): G.put(g0 + 2*n, f)
    G.put(0, lambda: a.P.stamp(2)); G.put(160, lambda: a.P.stamp(3))
    G.emit()
    a.P.stamp(4)
    a.wait(vm=["g"])
    for T in range(4): a(f"v_sub_f32 v{GR+4+T}, 1.0, v{GR+T}")
    for T in range(4):
        for i in range(20): a(f"v_mul_f32 v{20*T+i}, v{GR+T}, v{20*T+i}")
    for T in range(4):
        for i in range(20): a(f"v_fmac_f32 v{20*T+i}, v{GR+4+T}, v{80+20*T+i}")
    a("s_mul_i32 s60, s44, 5120")
    a(f"v_add_u32 v{T0}, s60, v{VA}")
    a(f"v_add_u32 v{T1}, 40960, v{T0}")
    for T in range(4):
        for jt in range(5):
            reg = T0 if T < 2 else T1
            a.lds(f"ds_write_b128 v{reg}, {vr(20*T+4*jt,4)} offset:{(T%2)*20480 + jt*1024}")
    a("s_mul_i32 s60, s44, 20480")
    T0 = 163
    a(f"v_add_u32 v{T0}, s60, v{VA}")
    a.wait(lg_all=True)
    a("s_barrier")
    a.P.stamp(5)
    for jt in range(5):
        for s in range(4):
            a.lds(f"ds_read_b128 {vr(80+20*s+4*jt,4)}, v{T0} offset:{s*5120 + jt*1024}", ("r",jt))
    a(f"v_and_b32 v{T1}, 15, v{LANE}")
    a(f"v_mul_u32_u24 v{T1}, 1280, v{T1}")
    a(f"v_lshrrev_b32 v{VB}, 4, v{LANE}")
    a(f"v_lshl_add_u32 v{T1}, v{VB}, 3, v{T1}")
    a("s_lshl_b32 s60, s3, 2")
    a("s_add_u32 s60, s60, s44")
    a(f"s_mul_i32 s60, s60, {16*1280}")
    a("s_mul_i32 s61, s22, 160")
    a("s_add_u32 s60, s60, s61")
    for jt in range(5):
        a.wait(lg=[("r",jt)])
        for i in range(4):
            r = 80 + 4*jt + i
            a(f"v_add_f32 v{r}, v{r}, v{r+20}")
            a(f"v_add_f32 v{r+40}, v{r+40}, v{r+60}")
        for i in range(4):
            r = 80 + 4*jt + i
            a(f"v_add_f32 v{r}, v{r}, v{r+40}")
        r = 80 + 4*jt
        a(f"v_cvt_pk_bf16_f32 v{r}, v{r}, v{r+1}")
        a(f"v_cvt_pk_bf16_f32 v{r+1}, v{r+2}, v{r+3}")
        a.vmem(f"buffer_store_dwordx2 {vr(r,2)}, v{T1}, s[36:39], s60 offen offset:{32*jt}")
    a.P.finish()
    a.label("L_k2_exit")
    a("s_endpgm")

def kd(name, nv=512, acc=256):
    return f""".p2align 6
.amdhsa_kernel {name}
  .amdhsa_next_free_vgpr {nv}
  .amdhsa_next_free_sgpr 102
  .amdhsa_accum_offset {acc}
  .amdhsa_group_segment_fixed_size 0
  .amdhsa_kernarg_size 88
  .amdhsa_user_sgpr_count 2
  .amdhsa_user_sgpr_kernarg_segment_ptr 1
  .amdhsa_system_sgpr_workgroup_id_x 1
.end_amdhsa_kernel
"""
def main(out):
    a = Asm()
    a.raw("; @launch kernel=k1_kernel grid=(256,1,1) block=(256,1,1) lds=147456")
    a.raw("; @launch kernel=k2_kernel grid=(256,1,1) block=(256,1,1) lds=81920")
    a.raw('.amdgcn_target "amdgcn-amd-amdhsa--gfx950"')
    a.raw(".text")
    gen_K1(a)
    gen_K2(a)
    a.raw('.section .rodata,"a"')
    a.raw(kd("k1_kernel")); a.raw(kd("k2_kernel"))
    open(out, "w").write(a.text())
main(sys.argv[1])
```

```python
import sys, math
from asmlib import *

NAME = "gated_mix__sliding_local_dilated__swiglu_ffn__prompt"
ACT_SIZE = 128*68*1024
W2P_OFF = 0x900000; W2P_SIZE = 8*68*5*1024
G_OFF = 0xC00000; G_SIZE = 8192
TS = 68*1024
import struct
def f2u(x): return struct.unpack("<I", struct.pack("<f", x))[0]
LOG2E = 1.4426950408889634

def srd(a, d, base, size, off=0):
    if off:
        a(f"s_add_u32 s{d}, s{base}, {hex(off)}")
        a(f"s_addc_u32 s{d+1}, s{base+1}, 0")
    else:
        a(f"s_mov_b32 s{d}, s{base}")
        a(f"s_mov_b32 s{d+1}, s{base+1}")
    a(f"s_mov_b32 s{d+2}, {size}")
    a(f"s_mov_b32 s{d+3}, 0x20000")

PROF = "--prof" in sys.argv
PROF_OFF = 0x1000000
class Prof:
    def __init__(self, a, kern): self.a = a; self.k = kern
    def stamp(self, i, real=False):
        if PROF: self.a(f"{'s_memrealtime' if real else 's_memtime'} s[{86+2*i}:{87+2*i}]")
    def finish(self, vt=250):
        if not PROF: return
        a = self.a
        a("s_mov_b64 exec, -1")
        a("s_waitcnt vmcnt(0)")
        self.stamp(6); self.stamp(7, True)
        a("s_waitcnt lgkmcnt(0)")
        a(f"v_mov_b32 v{vt}, 0")
        for i in range(8): a(f"v_writelane_b32 v{vt}, s{86+2*i}, {i}")
        srd(a, 24, 20, 0x100000, PROF_OFF)
        a(f"v_mbcnt_lo_u32_b32 v{vt+1}, -1, 0")
        a(f"v_lshlrev_b32 v{vt+1}, 2, v{vt+1}")
        a(f"s_lshl_b32 s60, s2, 2")
        a(f"s_add_u32 s60, s60, s44")
        a(f"s_add_u32 s60, s60, {self.k*1024}")
        a(f"s_lshl_b32 s60, s60, 5")
        a("s_mov_b64 exec, 0xff")
        a(f"buffer_store_dword v{vt}, v{vt+1}, s[24:27], s60 offen")

class Gaps:
    def __init__(self): self.m = []; self.f = []; self.cost = []
    def add(self, fn): self.m.append(fn); self.f.append([]); self.cost.append(0); return len(self.m)-1
    def put(self, i, fn, cost=1): self.f[i].append(fn); self.cost[i] += cost
    def emit(self):
        for m, fl in zip(self.m, self.f):
            m()
            for f in fl: f()

def voffX_code(a, dst, lane, t0, t1):
    a(f"s_lshl_b32 s52, s44, 2")
    a(f"v_lshrrev_b32 v{t0}, 4, v{lane}")
    a(f"v_add_u32 v{t0}, s52, v{t0}")
    a(f"v_xor_b32 v{t0}, v{t0}, v{lane}")
    a(f"v_and_b32 v{t0}, 7, v{t0}")
    a(f"v_lshlrev_b32 v{t0}, 4, v{t0}")
    a(f"v_lshrrev_b32 v{t1}, 3, v{lane}")
    a(f"v_mul_u32_u24 v{t1}, 1280, v{t1}")
    a(f"v_add_u32 v{dst}, v{t0}, v{t1}")

def prepack_setup(a):
    a("s_lshr_b32 s59, s53, 1")
    a("s_and_b32 s60, s53, 1")
    a("s_lshl_b32 s60, s60, 2")
    a("s_add_u32 s60, s60, s44")
    a("s_sub_u32 s54, s59, 20")
    a("s_lshl_b32 s54, s54, 5")
    a("s_mov_b32 s55, 16\ns_mov_b32 s56, 4\ns_mov_b32 s57, 8")
    a("s_cmp_lt_u32 s59, 20")
    a("s_cselect_b32 s36, s8, s16")
    a("s_cselect_b32 s37, s9, s17")
    a(f"s_mov_b32 s38, {1536*1280}")
    a(f"s_cselect_b32 s38, {640*1280}, s38")
    a("s_mov_b32 s39, 0x20000")
    a("s_mul_i32 s61, s59, 160")
    a(f"s_sub_u32 s61, s61, {160*16-16}")
    a("s_cmp_lt_u32 s59, 20")
    a("s_cselect_b32 s54, s61, s54")
    a("s_cselect_b32 s55, 80, s55")
    a("s_cselect_b32 s56, 40, s56")
    a("s_cselect_b32 s57, 20, s57")
    a("s_mul_i32 s61, s59, 40")
    a("s_cmp_lt_u32 s59, 16")
    a("s_cselect_b32 s54, s61, s54")
    a("s_cselect_b32 s55, 20, s55")
    a("s_cselect_b32 s56, 4, s56")
    a("s_cselect_b32 s57, 8, s57")
    for r in (54, 55, 56, 57): a(f"s_mul_i32 s{r}, s{r}, 1280")
    a("s_mul_i32 s61, s60, 160")
    a("s_add_u32 s54, s54, s61")
    a("s_mul_i32 s58, s60, 68")
    a("s_add_u32 s58, s58, s59")
    a("s_mul_i32 s58, s58, 5120")
    a("s_mul_i32 s62, s44, 8704")
    srd(a, 40, 20, W2P_SIZE, W2P_OFF)

def prepack_ops(a, lane, vdma, vtr, vst, t0, fr):
    addr = []
    def L(s): return lambda: a(s)
    addr += [L(f"v_lshrrev_b32 v{t0}, 4, v{lane}"),
             L(f"v_and_b32 v{vdma}, 15, v{lane}"),
             L(f"v_sub_u32 v{vdma}, v{vdma}, v{t0}"),
             L(f"v_sub_u32 v{vdma}, v{vdma}, v{t0}"),
             L(f"v_cmp_gt_u32 vcc, 10, v{vdma}"),
             L(f"v_lshlrev_b32 v{vdma}, 4, v{vdma}"),
             L(f"v_mul_u32_u24 v{t0}, 1280, v{t0}"),
             L(f"v_add_u32 v{vdma}, v{vdma}, v{t0}"),
             L(f"v_mov_b32 v{t0}, 0x40000000"),
             L(f"v_cndmask_b32 v{vdma}, v{t0}, v{vdma}, vcc"),
             L(f"v_lshrrev_b32 v{t0}, 4, v{lane}"),
             L(f"v_mul_u32_u24 v{vtr}, 2176, v{t0}"),
             L(f"v_bfe_u32 v{t0}, v{lane}, 2, 2"),
             L(f"v_mul_u32_u24 v{t0}, 288, v{t0}"),
             L(f"v_add_u32 v{vtr}, v{vtr}, v{t0}"),
             L(f"v_and_b32 v{t0}, 3, v{lane}"),
             L(f"v_lshlrev_b32 v{t0}, 3, v{t0}"),
             L(f"v_add3_u32 v{vtr}, v{vtr}, v{t0}, s62"),
             L(f"v_lshlrev_b32 v{vst}, 4, v{lane}")]
    dma = []
    for n in range(8):
        q, j = n >> 1, n & 1
        def f(n=n, q=q, j=j):
            a(f"s_add_u32 m0, s62, {n*1088}")
            a("s_mov_b32 s61, s54")
            if q >> 1: a("s_add_u32 s61, s61, s55")
            if q & 1: a("s_add_u32 s61, s61, s56")
            if j: a("s_add_u32 s61, s61, s57")
            a.vmem(f"buffer_load_dwordx4 v{vdma}, s[36:39], s61 offen lds", "pp")
        dma.append(f)
    rd = []
    for jt in range(5):
        for j in range(2):
            def f(jt=jt, j=j):
                a.wait(vm=["pp"])
                a.lds(f"ds_read_b64_tr_b16 {vr(fr+4*jt+2*j,2)}, v{vtr} offset:{j*1088+jt*32}", f"ppr{jt}")
            rd.append(f)
    st = []
    for jt in range(5):
        def f(jt=jt):
            a.wait(lg=[f"ppr{jt}"])
            if jt == 4:
                a("s_add_u32 s58, s58, 4096")
                a.vmem(f"buffer_store_dwordx4 {vr(fr+4*jt,4)}, v{vst}, s[40:43], s58 offen")
            else:
                a.vmem(f"buffer_store_dwordx4 {vr(fr+4*jt,4)}, v{vst}, s[40:43], s58 offen offset:{jt*1024}")
        st.append(f)
    return addr, dma, rd, st

def gen_F(a):
    a.reset_counters()
    LANE = 185; T0, T1 = 186, 187
    XB = 98304
    VX = 176; VW = 180; VOW = 182; VOX = 183; VST = 184
    srd(a, 24, 4, 2048*1280)
    a("s_and_b32 s52, s44, 1")
    a("s_cmp_eq_u32 s52, 0")
    a("s_cselect_b32 s28, s12, s14")
    a("s_cselect_b32 s29, s13, s15")
    a(f"s_mov_b32 s30, {640*3072}")
    a("s_mov_b32 s31, 0x20000")
    voffX_code(a, VOX, LANE, T0, T1)
    a("s_mul_i32 s46, s64, 192")
    a("s_lshl_b32 s52, s44, 3")
    a("s_add_u32 s46, s46, s52")
    a("s_mul_i32 s46, s46, 1280")
    a("s_lshl_b32 s48, s44, 10")
    a(f"s_add_u32 s48, s48, {XB}")
    a("s_and_b32 s52, s44, 1")
    a("s_lshl_b32 s52, s52, 2")
    a(f"v_lshrrev_b32 v{T0}, 4, v{LANE}")
    a(f"v_or_b32 v{T1}, s52, v{T0}")
    a(f"v_lshlrev_b32 v{T1}, 1, v{T1}")
    a(f"v_xor_b32 v{T1}, v{T1}, v{LANE}")
    a(f"v_and_b32 v{T1}, 15, v{T1}")
    a(f"v_lshlrev_b32 v{T1}, 4, v{T1}")
    a(f"v_mul_u32_u24 v{T0}, 3072, v{T0}")
    a(f"v_add_u32 v{VOW}, v{T0}, v{T1}")
    a("s_lshr_b32 s52, s44, 1")
    a(f"s_mul_i32 s45, s52, {4*3072}")
    a("s_lshl_b32 s61, s63, 8")
    a("s_add_u32 s45, s45, s61")
    a(f"s_sub_u32 s45, s45, {8*3072}")
    a("s_lshl_b32 s47, s44, 10")

    def dmaW(p, i):
        def f():
            a(f"s_add_u32 m0, s47, {(p%3)*32768 + i*4096}")
            a(f"s_add_u32 s45, s45, {8*3072}")
            a.vmem(f"buffer_load_dwordx4 v{VOW}, s[28:31], s45 offen lds", ("W", p, i))
        return f
    def dmaX(p, i):
        if p < 10: off = i*40960 + 128*p
        else:
            e = 4*(p-10) + i; off = (4 + e//10)*40960 + (e%10)*128
        def f():
            a(f"s_add_u32 m0, s48, {(p%3)*16384 + i*4096}")
            a(f"s_add_u32 s61, s46, {off}")
            a.vmem(f"buffer_load_dwordx4 v{VOX}, s[24:27], s61 offen lds", ("X", p, i))
        return f
    def dmas(p):
        if p < 10: return [dmaX(p, i) for i in range(4)] + [dmaW(p, i) for i in range(8)]
        if p < 15: return [dmaX(p, i) for i in range(4)]
        return []
    def tags(p):
        return [("X", p, i) for i in range(4)] + [("W", p, i) for i in range(8)]

    d0 = dmas(0)
    for f in d0: f()
    d1 = dmas(1)
    srd(a, 32, 20, ACT_SIZE)
    a("s_lshl_b32 s52, s44, 1")
    a(f"v_bfe_u32 v{T0}, v{LANE}, 2, 3")
    a(f"v_xor_b32 v{T1}, s52, v{T0}")
    a(f"v_lshlrev_b32 v{T1}, 5, v{T1}")
    a(f"v_lshl_add_u32 v{T1}, v{T0}, 8, v{T1}")
    a(f"v_lshrrev_b32 v{T0}, 5, v{LANE}")
    a(f"v_lshl_add_u32 v{T1}, v{T0}, 12, v{T1}")
    a(f"v_and_b32 v{T0}, 3, v{LANE}")
    a(f"v_lshl_add_u32 v{VW}, v{T0}, 3, v{T1}")
    a(f"v_xor_b32 v{VW+1}, 32, v{VW}")
    a(f"v_bfe_u32 v{T0}, v{LANE}, 1, 3")
    a(f"v_lshrrev_b32 v{T1}, 5, v{LANE}")
    a(f"v_xor_b32 v{T0}, v{T0}, v{T1}")
    a(f"v_lshlrev_b32 v{T0}, 4, v{T0}")
    a(f"v_and_b32 v{T1}, 31, v{LANE}")
    a(f"v_lshl_add_u32 v{T0}, v{T1}, 7, v{T0}")
    a(f"v_add_u32 v{VX}, {XB}, v{T0}")
    for s in range(1, 4): a(f"v_xor_b32 v{VX+s}, {s<<5}, v{VX}")
    a(f"v_bfe_u32 v{T0}, v{LANE}, 4, 1")
    a(f"v_mul_u32_u24 v{T0}, {TS}, v{T0}")
    a(f"v_lshrrev_b32 v{T1}, 5, v{LANE}")
    a(f"v_lshl_add_u32 v{T0}, v{T1}, 8, v{T0}")
    a(f"v_and_b32 v{T1}, 15, v{LANE}")
    a(f"v_lshl_add_u32 v{VST}, v{T1}, 4, v{T0}")
    a(f"s_mul_i32 s49, s64, {12*TS}")
    a("s_lshl_b32 s52, s63, 2")
    a("s_add_u32 s52, s52, s44")
    a("s_add_u32 s52, s52, 20")
    a("s_lshl_b32 s52, s52, 10")
    a("s_add_u32 s49, s49, s52")
    a(f"s_mov_b32 s50, {hex(f2u(-LOG2E))}")
    a("s_mul_i32 s53, s64, 12")
    a("s_add_u32 s53, s53, s63")
    prepack_setup(a)
    for f in d1[:6]: f()

    def Wreg(t, u):
        return R("a", 8*t + 4*u) if t < 32 else R("v", 192 + 8*(t-32) + 4*u)
    def XA(t, c): return R("v", 128 + 16*(t & 1) + 4*c)
    def XBr(t): return R("v", 160 + 4*(t & 3))
    def rdW(t, u, j):
        def f():
            a.lds(f"ds_read_b64_tr_b16 {Wreg(t,u)(2, 2*j)}, v{VW+u} offset:{(t%4)*8192 + j*2048}", ("w", t, u))
        return f
    def rdXA(t, c):
        p = t // 4
        def f():
            a.lds(f"ds_read_b128 {XA(t,c)(4)}, v{VX + t%4} offset:{(p%3)*16384 + c*4096}", ("x", t, c))
        return f
    def rdXB(t):
        e = (t-40)//4; p = 10 + e//4; i = e % 4
        def f():
            a.lds(f"ds_read_b128 {XBr(t)(4)}, v{VX + t%4} offset:{(p%3)*16384 + i*4096}", ("x", t, 0))
        return f
    def readsA(t):
        return [rdW(t,0,0), rdW(t,0,1), rdXA(t,0), rdW(t,1,0), rdW(t,1,1), rdXA(t,1), rdXA(t,2), rdXA(t,3)]
    def barrier(vmtags):
        def f():
            a.wait(vm=vmtags, lg_all=True)
            a("s_barrier")
        return f
    def wslot_adv(p):
        d = 32768 if p % 3 else -65536
        def f():
            for u in range(2):
                if d > 0: a(f"v_add_u32 v{VW+u}, {d}, v{VW+u}")
                else: a(f"v_subrev_u32 v{VW+u}, {-d}, v{VW+u}")
        return f

    barrier([("X",0,i) for i in range(4)] + [("W",0,0),("W",0,1)])()
    a.P.stamp(2)
    for f in readsA(0): f()

    G = Gaps()
    def mf(acc, w, x, first, need):
        def f():
            a.wait(lg=need)
            c = "0" if first else vr(acc,16)
            a(f"v_mfma_f32_32x32x16_bf16 {vr(acc,16)}, {w(4)}, {x(4)}, {c}")
        return f
    idx = {}
    for t in range(40):
        for c in range(4):
            for u in range(2):
                idx[(t,c,u)] = G.add(mf(32*c+16*u, Wreg(t,u), XA(t,c), t == 0, [("w",t,u),("x",t,c)]))
    for t in range(40, 120):
        k = (t-40) % 40
        acc = 128 if t < 80 else 0
        for u in range(2):
            idx[(t,0,u)] = G.add(mf(acc+16*u, Wreg(k,u), XBr(t), k == 0, [("x",t,0)]))
    for t in range(40):
        g0 = idx[(t,0,0)]
        nxt = t+1
        if nxt < 40: rds = readsA(nxt)
        else: rds = [rdXB(40), rdXB(41), rdXB(42)]
        needbar = (nxt % 4 == 0) or nxt < 4
        if needbar:
            if nxt < 4: vt = [("W",0,2*nxt),("W",0,2*nxt+1)]
            else: vt = tags(nxt//4)
            G.put(g0+1, barrier(vt), 2)
            if nxt % 4 == 0 and nxt < 40: G.put(g0+1, wslot_adv(nxt//4), 2)
            pos = [1,1,2,2,3,4,5,6]
        else:
            pos = [0,0,1,2,3,4,5,6]
        for f, o in zip(rds, pos): G.put(g0+o, f)
    for t in range(40, 117):
        g0 = idx[(t,0,0)]
        nxt = t+3
        if (nxt-40) % 16 == 0:
            G.put(g0, barrier(tags(10 + (nxt-40)//16)), 2)
        G.put(g0, rdXB(nxt))
    def barpos(q):
        if q <= 10: return idx[(4*q-1,0,0)] + 1
        return idx[(40 + 16*(q-10) - 3, 0, 0)]
    def spread(fs, lo, hi, cost):
        n = len(fs)
        for i, f in enumerate(fs):
            G.put(lo + (hi-lo)*i//n, f, cost)
    spread(d1[6:] + dmas(2), 0, barpos(1), 3)
    for p in range(3, 15):
        spread(dmas(p), barpos(p-2)+1, barpos(p-1), 3)
    def epi(acc, ch, u):
        ops = []
        def L(s): return (lambda: a(s), 1)
        def T(s): return (lambda: a(s), 2)
        for r in range(8): ops.append(L(f"v_mul_f32 v{acc+8+r}, v{acc+r}, v{acc+8+r}"))
        for r in range(8): ops.append(L(f"v_mul_f32 v{acc+r}, s50, v{acc+r}"))
        ops2 = []
        for r in range(8): ops2.append(T(f"v_exp_f32 v{acc+r}, v{acc+r}"))
        for r in range(8): ops2.append(L(f"v_add_f32 v{acc+r}, 1.0, v{acc+r}"))
        for r in range(8): ops2.append(T(f"v_rcp_f32 v{acc+r}, v{acc+r}"))
        for r in range(8): ops2.append(L(f"v_mul_f32 v{acc+8+r}, v{acc+r}, v{acc+8+r}"))
        for r in range(4): ops2.append(L(f"v_cvt_pk_bf16_f32 v{acc+r}, v{acc+8+2*r}, v{acc+9+2*r}"))
        def st():
            a(f"s_add_u32 s61, s49, {ch*2*TS}")
            a.vmem(f"buffer_store_dwordx4 {vr(acc,4)}, v{VST}, s[32:35], s61 offen offset:{u*512}")
        ops2.append((st, 2))
        return ops + ops2
    BUD = 6
    def fill(ops, start):
        g = start
        for f, c in ops:
            while g < len(G.m)-1 and G.cost[g] + c > BUD: g += 1
            G.put(g, f, c)
        return g
    gB1 = idx[(40,0,0)]; gB2 = idx[(80,0,0)]
    pa, pd, pr, ps = prepack_ops(a, LANE, VOW, T1, 188, T0, 32)
    g = fill([(f,1) for f in pa], gB1)
    g = fill([(f,4) for f in pd], g)
    g = gB1 + 4
    for ch in range(4):
        for u in range(2):
            g = fill(epi(32*ch+16*u, ch, u), g)
            if ch == 0: assert g < gB2 - 4
            if ch == 1: gch1 = g
    g = max(g, gB2 + 4)
    for u in range(2): g = fill(epi(128+16*u, 4, u), g)
    g2 = fill([(f,1) for f in pr], max(gch1+2, g-30))
    g2 = fill([(f,2) for f in ps], g2+3)
    print("F: epilogue ends at gap", g, g2, "of", len(G.m), file=sys.stderr)
    G.put(gB1-1, lambda: a.P.stamp(3)); G.put(gB2-1, lambda: a.P.stamp(4))
    G.emit()
    a.P.stamp(5)
    a("s_nop 7\ns_nop 3")
    e0 = epi(0, 5, 0); e1 = epi(16, 5, 1)
    for (f0,_), (f1,_) in zip(e0, e1): f0(); f1()
    a.P.finish()
    a("s_endpgm")

def gen_spare(a):
    a.reset_counters()
    LANE = 185
    a("s_add_u32 s53, s3, 132")
    prepack_setup(a)
    pa, pd, pr, ps = prepack_ops(a, LANE, 182, 187, 188, 186, 32)
    for f in pa + pd + pr + ps: f()
    a.P.finish()
    a("s_endpgm")

def gen_Q(a):
    a.reset_counters()
    LANE = 255; T0, T1 = 254, 253
    a(f"v_mov_b32 v{LANE}, v185")
    WS = 17920; XB = 4*WS; XS = 20480
    VX = 232; VW1 = 234; VW3 = 235; VW4 = 236; VOW = 237; VOX = 238
    srd(a, 24, 4, 2048*1280)
    srd(a, 28, 6, 640*3840)
    voffX_code(a, VOX, LANE, T0, T1)
    a("s_mul_i32 s46, s64, 144")
    a("s_lshl_b32 s52, s44, 3")
    a("s_add_u32 s46, s46, s52")
    a("s_sub_u32 s46, s46, 16")
    a("s_mul_i32 s46, s46, 1280")
    a("s_max_i32 s65, s46, 0")
    a("s_lshl_b32 s48, s44, 10")
    a(f"s_add_u32 s48, s48, {XB}")
    a(f"v_subrev_u32 v{T0}, 34, v{LANE}")
    a(f"v_cmp_lt_u32 vcc, 31, v{LANE}")
    a(f"v_mov_b32 v{T1}, 3840")
    a("s_nop 0")
    a(f"v_cndmask_b32 v{T0}, v{LANE}, v{T0}, vcc")
    a(f"v_cndmask_b32 v{VOW}, 0, v{T1}, vcc")
    a(f"v_mul_u32_u24 v{T1}, 205, v{T0}")
    a(f"v_lshrrev_b32 v{T1}, 11, v{T1}")
    a(f"v_mul_u32_u24 v{T1}, {1280-160}, v{T1}")
    a(f"v_add_u32 v{VOW}, v{VOW}, v{T1}")
    a(f"v_lshl_add_u32 v{VOW}, v{T0}, 4, v{VOW}")
    a(f"v_cmp_gt_u32 vcc, 30, v{T0}")
    a(f"v_mov_b32 v{T1}, 0x40000000")
    a(f"s_mul_i32 s45, s44, {2*3840}")
    a(f"v_cndmask_b32 v{VOW}, v{T1}, v{VOW}, vcc")
    a("s_mul_i32 s52, s63, 160")
    a("s_add_u32 s45, s45, s52")
    a(f"s_sub_u32 s45, s45, {8*3840}")
    a("s_mul_i32 s47, s44, 1088")
    def dmaW(t, i):
        def f():
            a(f"s_add_u32 m0, s47, {(t%4)*WS + i*4480}")
            a(f"s_add_u32 s45, s45, {8*3840}")
            a.vmem(f"buffer_load_dwordx4 v{VOW}, s[28:31], s45 offen lds", ("W", t))
        return f
    def dmaX(p, i):
        def f():
            a(f"s_add_u32 m0, s48, {(p%3)*XS + i*4096}")
            a(f"s_add_u32 s61, {'s65' if i == 0 else 's46'}, {i*40960 + 128*p}")
            a.vmem(f"buffer_load_dwordx4 v{VOX}, s[24:27], s61 offen lds", ("X", p))
        return f
    dW = lambda t: [dmaW(t, i) for i in range(4)] if t < 20 else []
    dX = lambda p: [dmaX(p, i) for i in range(5)] if p < 10 else []
    for f in dW(0) + dX(0) + dW(1): f()
    srd(a, 32, 20, ACT_SIZE)
    srd(a, 36, 18, 1280)
    srd(a, 40, 20, G_SIZE, G_OFF)
    a(f"v_bfe_u32 v{T0}, v{LANE}, 1, 3")
    a(f"v_lshrrev_b32 v{T1}, 4, v{LANE}")
    a(f"v_xor_b32 v{T0}, v{T0}, v{T1}")
    a(f"v_lshlrev_b32 v{T0}, 4, v{T0}")
    a(f"v_and_b32 v{T1}, 15, v{LANE}")
    a(f"v_lshl_add_u32 v{T0}, v{T1}, 7, v{T0}")
    a(f"v_add_u32 v{VX}, {XB}, v{T0}")
    a(f"v_xor_b32 v{VX+1}, 64, v{VX}")
    a(f"v_lshrrev_b32 v{T0}, 4, v{LANE}")
    a(f"v_mul_u32_u24 v{T0}, 4480, v{T0}")
    a(f"v_bfe_u32 v{T1}, v{LANE}, 2, 2")
    a(f"v_mul_u32_u24 v{T1}, 544, v{T1}")
    a("s_mul_i32 s52, s44, 40")
    a(f"v_add3_u32 v{T0}, v{T0}, v{T1}, s52")
    a(f"v_and_b32 v{T1}, 3, v{LANE}")
    a(f"v_lshl_add_u32 v{VW1}, v{T1}, 3, v{T0}")
    a(f"v_add_u32 v{VW3}, 320, v{VW1}")
    a(f"v_add_u32 v{VW4}, 32, v{T0}")
    a(f"v_cmp_eq_u32 vcc, 0, v{T1}")
    a("s_nop 1")
    a(f"v_cndmask_b32 v{VW3}, v{VW3}, v{VW4}, vcc")
    a(f"v_add_u32 v{VW4}, 192, v{T0}")
    a(f"v_add_u32 v252, 320, v{T0}")
    a(f"v_cmp_eq_u32 vcc, 1, v{T1}")
    a("s_nop 1")
    a(f"v_cndmask_b32 v{VW4}, v{VW4}, v252, vcc")
    a(f"v_add_u32 v252, 352, v{T0}")
    a(f"v_cmp_eq_u32 vcc, 2, v{T1}")
    a("s_nop 1")
    a(f"v_cndmask_b32 v{VW4}, v{VW4}, v252, vcc")
    for f in dW(2): f()

    ORD = [3, 4, 2, 1]
    def Wf(t, o): return R("a", 80 + 16*(t&1) + 4*o)
    def Xf(t, tile): return R("a", 40*(t&1) + 4*tile)
    def rdW(t, o, j):
        T = ORD[o]
        reg = {1: VW1, 2: VW1, 3: VW3, 4: VW4}[T]
        off = (t%4)*WS + j*2176 + (160 if T == 2 else 0)
        return lambda: a.lds(f"ds_read_b64_tr_b16 {Wf(t,o)(2,2*j)}, v{reg} offset:{off}", ("w",t,o))
    def rdX(t, tile):
        p = t//2
        return lambda: a.lds(f"ds_read_b128 {Xf(t,tile)(4)}, v{VX + t%2} offset:{(p%3)*XS + tile*2048}", ("x",t,tile))
    def reads(t):
        r = [rdW(t,0,0), rdW(t,0,1), rdX(t,0)]
        for o in range(1,4): r += [rdW(t,o,0), rdW(t,o,1)]
        return r + [rdX(t,tile) for tile in range(1,10)]
    def barrier(vmtags):
        def f():
            a.wait(vm=vmtags, lg_all=True)
            a("s_barrier")
        return f
    barrier([("W",0),("X",0)])()
    a.P.stamp(2)
    for f in reads(0): f()
    G = Gaps()
    start = {}
    for t in range(20):
        for tile in range(10):
            for o in range(4):
                if tile == 0 and o == 3: continue
                def f(t=t, tile=tile, o=o):
                    a.wait(lg=[("w",t,o),("x",t,tile)])
                    acc = 16*tile + 4*o
                    c = "0" if t == 0 else vr(acc,4)
                    a(f"v_mfma_f32_16x16x32_bf16 {vr(acc,4)}, {Wf(t,o)(4)}, {Xf(t,tile)(4)}, {c}")
                i = G.add(f)
                if tile == 0 and o == 0: start[t] = i
    ZX = 160; ZG = 200
    def zaddr():
        a(f"v_lshrrev_b32 v{T0}, 4, v{LANE}")
        a(f"v_mul_u32_u24 v{T0}, 1280, v{T0}")
        a(f"v_and_b32 v{T1}, 15, v{LANE}")
        a(f"v_lshlrev_b32 v{T1}, 4, v{T1}")
        a(f"v_add_u32 v{T0}, v{T0}, v{T1}")
        a("s_lshl_b32 s66, s64, 3")
        a("s_add_u32 s66, s66, s63")
        a("s_lshl_b32 s66, s66, 2")
        a("s_add_u32 s66, s66, s44")
        a("s_lshl_b32 s66, s66, 3")
        a("s_mul_i32 s67, s66, 1280")
        a("s_add_u32 s68, s67, 5120")
    zl = []
    for i in range(5):
        zl.append(lambda i=i: a.vmem(f"buffer_load_dwordx4 {vr(ZG+4*i,4)}, v{T1}, s[36:39], 0 offen offset:{256*i}", "z"))
    for ps_ in range(2):
        for i in range(5):
            zl.append(lambda i=i, ps_=ps_: a.vmem(f"buffer_load_dwordx4 {vr(ZX+20*ps_+4*i,4)}, v{T0}, s[24:27], s{67+ps_} offen offset:{256*i}", "z"))
    for t in range(20):
        g0 = start[t]
        dm = []
        if t+1 < 20:
            G.put(g0+2, barrier([("W",t+1),("X",(t+1)//2)]))
            for i, f in enumerate(reads(t+1)): G.put(g0+3+2*i, f)
        if t == 0: dm = dX(1) + dW(3) + dW(4) + dX(2)[:2]
        elif t == 1: dm = dX(2)[2:] + dW(5) + dX(3)[:3]
        else:
            dm = dW(t+4)
            if t % 2 == 1: dm += dX((t-1)//2+3)[:3]
            else: dm += dX((t-2)//2+3)[3:]
        if t == 16: dm = dm + [zaddr] + zl[:5]
        if t == 17: dm = dm + zl[5:]
        for i, f in enumerate(dm): G.put(g0 + 4 + (34*i)//len(dm), f)
    G.put(start[10], lambda: a.P.stamp(3))
    G.emit()
    a.P.stamp(4)
    a("s_barrier")
    a.wait(vm=["z"])
    for ps_ in range(2):
        for i in range(20):
            c = "0" if i == 0 else f"v{220+ps_}"
            a(f"v_dot2_f32_bf16 v{220+ps_}, v{ZX+20*ps_+i}, v{ZG+i}, {c}")
    a("s_nop 3")
    for sh in (8,4,2,1):
        for ps_ in range(2):
            a(f"v_add_f32_dpp v{220+ps_}, v{220+ps_}, v{220+ps_} row_ror:{sh} row_mask:0xf bank_mask:0xf")
        a("s_nop 1")
    a(f"s_mov_b32 s50, {hex(f2u(-LOG2E))}")
    for op in ["v_mul_f32 {0}, s50, {0}", "v_exp_f32 {0}, {0}", "v_add_f32 {0}, 1.0, {0}", "v_rcp_f32 {0}, {0}"]:
        for ps_ in range(2): a(op.format(f"v{220+ps_}"))
    a(f"v_lshrrev_b32 v{T0}, 4, v{LANE}")
    a(f"v_lshlrev_b32 v{T0}, 2, v{T0}")
    a("s_lshl_b32 s67, s66, 2")
    a.vmem(f"buffer_store_dword v220, v{T0}, s[40:43], s67 offen")
    a.vmem(f"buffer_store_dword v221, v{T0}, s[40:43], s67 offen offset:16")
    a.P.stamp(5)
    def setmask(s, fn):
        m = 0
        for l in range(64):
            if fn(l): m |= 1 << l
        a(f"s_mov_b32 s{s}, {hex(m & 0xffffffff)}")
        a(f"s_mov_b32 s{s+1}, {hex(m >> 32)}")
    PAR, IP0, IP1, G0, F0, F1 = 70, 72, 74, 76, 78, 80
    setmask(PAR, lambda l: l & 1)
    isprev = lambda l, j: 4*(l>>4) + 2*j + (l&1) > (l&15)
    setmask(IP0, lambda l: isprev(l,0))
    setmask(IP1, lambda l: isprev(l,1))
    setmask(G0, lambda l: l < 16)
    a("s_cmp_eq_u32 s64, 0")
    a(f"s_cselect_b64 s[{F0}:{F0+1}], s[{IP0}:{IP0+1}], 0")
    a(f"s_cselect_b64 s[{F1}:{F1+1}], s[{IP1}:{IP1+1}], 0")
    MP = 240
    NEG = 244; VWR = 245; VRM = 246; VRX = 247; VSO = 248; VSX = 249
    a(f"v_mov_b32 v{T0}, 0xffff")
    a(f"v_mov_b32 v{T1}, 0xffff0000")
    a(f"v_cndmask_b32 v{T0}, v{T0}, v{T1}, s[{PAR}:{PAR+1}]")
    for j, ip in enumerate((IP0, IP1)):
        a(f"v_cndmask_b32 v{MP+j}, 0, v{T0}, s[{ip}:{ip+1}]")
        a(f"v_cndmask_b32 v{MP+2+j}, v{T0}, 0, s[{ip}:{ip+1}]")
    a(f"v_mov_b32 v{NEG}, {hex(f2u(-1e30))}")
    a("s_mul_i32 s52, s44, 10240")
    a(f"v_and_b32 v{T0}, 15, v{LANE}")
    a(f"v_lshlrev_b32 v{T0}, 6, v{T0}")
    a(f"v_lshrrev_b32 v{T1}, 4, v{LANE}")
    a(f"v_lshlrev_b32 v{T1}, 4, v{T1}")
    a(f"v_add3_u32 v{VWR}, v{T0}, v{T1}, s52")
    a(f"v_lshrrev_b32 v{T0}, 2, v{LANE}")
    a(f"v_lshlrev_b32 v{T0}, 6, v{T0}")
    a(f"v_add_u32 v{T0}, s52, v{T0}")
    a(f"v_add_u32 v{VRX}, 40, v{T0}")
    a(f"v_and_b32 v{T1}, 3, v{LANE}")
    a(f"v_cmp_eq_u32 vcc, 0, v{T1}")
    a(f"v_lshlrev_b32 v{T1}, 4, v{T1}")
    a("s_nop 0")
    a(f"v_cndmask_b32 v{T1}, v{T1}, 24, vcc")
    a(f"v_add_u32 v{VRM}, v{T0}, v{T1}")
    a(f"v_lshrrev_b32 v{T0}, 5, v{LANE}")
    a(f"v_mul_u32_u24 v{T0}, {TS}, v{T0}")
    a(f"v_and_b32 v{T1}, 31, v{LANE}")
    a(f"v_lshl_add_u32 v{VSO}, v{T1}, 4, v{T0}")
    a(f"v_and_b32 v{T1}, 15, v{LANE}")
    a(f"v_lshlrev_b32 v{VSX}, 3, v{T1}")
    a(f"s_mul_i32 s82, s64, {9*TS}")
    a("s_lshl_b32 s52, s63, 11")
    a("s_lshl_b32 s61, s44, 9")
    a("s_add_u32 s83, s82, s52")
    a("s_add_u32 s83, s83, s61")
    a("s_lshl_b32 s52, s63, 2")
    a("s_add_u32 s52, s52, s44")
    a("s_lshl_b32 s52, s52, 7")
    a("s_add_u32 s84, s82, s52")
    a(f"s_add_u32 s84, s84, {16*1024}")
    a(f"s_mov_b32 s85, {hex(f2u(LOG2E * 20**-0.5))}")
    B = lambda t: 16*t
    SR = lambda t: 160 + 8*(t-1)
    for t in range(10):
        b = B(t)
        for i in range(6):
            a(f"v_cvt_pk_bf16_f32 v{b+i}, v{b+2*i}, v{b+2*i+1}")
        a.lds(f"ds_write_b128 v{VWR}, {vr(b,4)} offset:{t*1024}", ("vw",t))
        if t > 0:
            a(f"v_cndmask_b32 v{b+6}, 0, v{b}, s[{G0}:{G0+1}]")
            a(f"v_cndmask_b32 v{b+7}, 0, v{b+1}, s[{G0}:{G0+1}]")
            a(f"v_cvt_pk_bf16_f32 v{b+8}, v{b+12}, v{b+13}")
            a(f"v_cvt_pk_bf16_f32 v{b+9}, v{b+14}, v{b+15}")
    a("s_nop 1")
    for t in range(1, 10):
        a(f"v_mfma_f32_16x16x32_bf16 {vr(SR(t),4)}, {vr(B(t-1)+2,4)}, {vr(B(t)+6,4)}, 0")
        a(f"v_mfma_f32_16x16x32_bf16 {vr(SR(t)+4,4)}, {vr(B(t)+2,4)}, {vr(B(t)+6,4)}, 0")
    for t in range(10):
        a.lds(f"ds_read_b64_tr_b16 {vr(2*t,2,'a')}, v{VRM} offset:{t*1024}", ("vr",t))
        a.lds(f"ds_read_b64_tr_b16 {vr(20+2*t,2,'a')}, v{VRX} offset:{t*1024}", ("vr",t))
    TT = range(1, 10)
    def each(fmt):
        for t in TT:
            b = B(t); s = SR(t)
            a(fmt.format(**{f"b{i}": f"v{b+i}" for i in range(16)}, **{f"s{i}": f"v{s+i}" for i in range(8)}))
    par = f"s[{PAR}:{PAR+1}]"
    each("v_cndmask_b32 {b12}, {s0}, {s1}, " + par)
    each("v_cndmask_b32 {b13}, {s4}, {s5}, " + par)
    each("v_cndmask_b32 {b14}, {s2}, {s3}, " + par)
    each("v_cndmask_b32 {b15}, {s6}, {s7}, " + par)
    each("v_cndmask_b32 {b10}, {b13}, {b12}, " + f"s[{IP0}:{IP0+1}]")
    each("v_cndmask_b32 {b11}, {b15}, {b14}, " + f"s[{IP1}:{IP1+1}]")
    a(f"v_cndmask_b32 v{B(1)+10}, v{B(1)+10}, v{NEG}, s[{F0}:{F0+1}]")
    a(f"v_cndmask_b32 v{B(1)+11}, v{B(1)+11}, v{NEG}, s[{F1}:{F1+1}]")
    def xreduce(op):
        for sw in ("v_permlane32_swap_b32", "v_permlane16_swap_b32"):
            each("v_mov_b32 {b13}, {b12}")
            each(sw + " {b12}, {b13}")
            each(op + " {b12}, {b12}, {b13}")
    each("v_max_f32 {b12}, {b10}, {b11}")
    xreduce("v_max_f32")
    each("v_mul_f32 {b12}, s85, {b12}")
    each("v_fma_f32 {b10}, {b10}, s85, -{b12}")
    each("v_fma_f32 {b11}, {b11}, s85, -{b12}")
    each("v_exp_f32 {b10}, {b10}")
    each("v_exp_f32 {b11}, {b11}")
    each("v_add_f32 {b12}, {b10}, {b11}")
    xreduce("v_add_f32")
    each("v_rcp_f32 {b12}, {b12}")
    each("v_mul_f32 {b10}, {b10}, {b12}")
    each("v_mul_f32 {b11}, {b11}, {b12}")
    each("v_cvt_pk_bf16_f32 {b10}, {b10}, {b10}")
    each("v_cvt_pk_bf16_f32 {b11}, {b11}, {b11}")
    each("v_and_b32 {s0}, {b10}, " + f"v{MP}")
    each("v_and_b32 {s1}, {b11}, " + f"v{MP+1}")
    each("v_and_b32 {s2}, {b10}, " + f"v{MP+2}")
    each("v_and_b32 {s3}, {b11}, " + f"v{MP+3}")
    a.wait(lg_all=True)
    a("s_nop 1")
    for t in TT:
        a(f"v_mfma_f32_16x16x32_bf16 {vr(SR(t)+4,4)}, {vr(2*(t-1),4,'a')}, {vr(SR(t),4)}, 0")
        a(f"v_mfma_f32_16x16x32_bf16 {vr(B(t)+12,4)}, {vr(20+2*(t-1),4,'a')}, {vr(SR(t),4)}, 0")
    a("s_nop 7")
    for t in TT:
        d = B(t) if t % 2 == 1 else B(t-1) + 2
        a(f"v_cvt_pk_bf16_f32 v{d}, v{SR(t)+4}, v{SR(t)+5}")
        a(f"v_cvt_pk_bf16_f32 v{d+1}, v{SR(t)+6}, v{SR(t)+7}")
        a(f"v_cvt_pk_bf16_f32 v{B(t)+10}, v{B(t)+12}, v{B(t)+13}")
        a(f"v_cvt_pk_bf16_f32 v{B(t)+11}, v{B(t)+14}, v{B(t)+15}")
    a("s_nop 1")
    for t in (1,3,5,7,9):
        a(f"v_permlane32_swap_b32 v{B(t)}, v{B(t)+2}")
        a(f"v_permlane32_swap_b32 v{B(t)+1}, v{B(t)+3}")
    for t in TT:
        a(f"s_add_u32 s61, s84, {(t-1)*TS}")
        a.vmem(f"buffer_store_dwordx2 {vr(B(t)+10,2)}, v{VSX}, s[32:35], s61 offen")
    for t in (1,3,5,7,9):
        a(f"s_add_u32 s61, s83, {(t-1)*TS}")
        if t == 9: a("s_mov_b32 exec_hi, 0")
        a.vmem(f"buffer_store_dwordx4 {vr(B(t),4)}, v{VSO}, s[32:35], s61 offen")
    a.P.finish()
    a("s_endpgm")

def gen_K1(a):
    a.raw(".p2align 8")
    a.raw(".globl k1_kernel\n.type k1_kernel,@function")
    a.label("k1_kernel")
    a("s_cmp_ge_u32 s2, 256")
    a("s_cbranch_scc1 L_k1_exit")
    P = Prof(a, 0); a.P = P
    P.stamp(0, True); P.stamp(1)
    a("s_load_dwordx16 s[4:19], s[0:1], 0")
    a("s_load_dwordx2 s[20:21], s[0:1], 80")
    if "--cpf" in sys.argv:
        a("s_getpc_b64 s[22:23]")
        a("s_lshr_b32 s3, s2, 3")
        a("s_lshl_b32 s3, s3, 11")
        a("v_lshrrev_b32 v2, 6, v0")
        a("v_lshlrev_b32 v2, 9, v2")
        a("v_and_b32 v3, 3, v0")
        a("v_lshl_add_u32 v2, v3, 7, v2")
        a("v_add_u32 v2, s3, v2")
        a("v_min_u32 v2, CODE_END - k1_kernel - 64, v2")
        a("global_load_dword v4, v2, s[22:23]")
    a("v_lshrrev_b32 v1, 6, v0")
    a("v_and_b32 v185, 63, v0")
    a("s_and_b32 s3, s2, 7")
    a("v_readfirstlane_b32 s44, v1")
    a("s_lshr_b32 s22, s2, 3")
    a("s_and_b32 s23, s3, 1")
    a("s_lshr_b32 s3, s3, 1")
    a("s_mul_i32 s51, s23, 3")
    a("s_sub_u32 s51, 18, s51")
    a("s_cmp_lt_u32 s22, s51")
    a("s_cbranch_scc0 L_k1_notF")
    a("s_mul_i32 s64, s22, 43")
    a("s_lshr_b32 s64, s64, 7")
    a("s_mul_i32 s52, s64, 3")
    a("s_sub_u32 s63, s22, s52")
    a("s_mul_i32 s52, s3, 3")
    a("s_add_u32 s63, s63, s52")
    a("s_mul_i32 s52, s23, 6")
    a("s_add_u32 s64, s64, s52")
    a("s_waitcnt lgkmcnt(0)")
    gen_F(a)
    a.label("L_k1_notF")
    a("s_sub_u32 s22, s22, s51")
    a("s_and_b32 s63, s22, 1")
    a("s_lshl_b32 s52, s3, 1")
    a("s_add_u32 s63, s63, s52")
    a("s_lshr_b32 s64, s22, 1")
    a("s_mul_i32 s52, s23, 7")
    a("s_add_u32 s64, s64, s52")
    a("s_waitcnt lgkmcnt(0)")
    a("s_cmp_ge_u32 s64, 15")
    a("s_cbranch_scc1 L_k1_spare")
    gen_Q(a)
    a.label("L_k1_spare")
    gen_spare(a)
    a.label("L_k1_exit")
    a("s_endpgm")

def gen_K2(a):
    a.reset_counters()
    a.raw(".p2align 8")
    a.raw(".globl k2_kernel\n.type k2_kernel,@function")
    a.label("k2_kernel")
    a("s_cmp_ge_u32 s2, 256")
    a("s_cbranch_scc1 L_k2_exit")
    P = Prof(a, 1); a.P = P
    P.stamp(0, True); P.stamp(1)
    a("s_load_dwordx2 s[20:21], s[0:1], 80")
    a("s_load_dwordx2 s[18:19], s[0:1], 64")
    LANE = 160; VT = 164; VA = 168; VB = 169; VE = 172; GR = 176; T0 = 161; T1 = 162
    a("v_lshrrev_b32 v1, 6, v0")
    a(f"v_and_b32 v{LANE}, 63, v0")
    a("s_and_b32 s3, s2, 7")
    a("v_readfirstlane_b32 s44, v1")
    a("s_lshl_b32 s3, s3, 2")
    a("s_bfe_u32 s22, s2, 0x20003")
    a("s_add_u32 s3, s3, s22")
    a("s_lshr_b32 s22, s2, 5")
    a(f"v_lshlrev_b32 v{VA}, 4, v{LANE}")
    a(f"v_add_u32 v{VB}, 4096, v{VA}")
    for T in range(4): a(f"v_add_u32 v{VT+T}, {T*TS}, v{VA}")
    a(f"v_lshrrev_b32 v{T0}, 4, v{LANE}")
    a(f"v_lshlrev_b32 v{T0}, 8, v{T0}")
    a(f"v_and_b32 v{T1}, 15, v{LANE}")
    a(f"v_lshl_add_u32 v{T0}, v{T1}, 3, v{T0}")
    for T in range(4): a(f"v_add_u32 v{VE+T}, {T*TS}, v{T0}")
    a(f"s_mul_i32 s45, s3, {4*TS}")
    a(f"s_mul_i32 s46, s22, {68*5120}")
    a("s_lshl_b32 s47, s44, 2")
    a("s_add_u32 s48, s44, 16")
    a("s_mul_i32 s49, s44, 12")
    a("s_add_u32 s49, s49, 20")
    for i, r in enumerate((47, 48, 49)):
        a(f"s_lshl_b32 s{50+i}, s{r}, 10")
        a(f"s_add_u32 s{50+i}, s{50+i}, s45")
        a(f"s_mul_i32 s{53+i}, s{r}, 5120")
        a(f"s_add_u32 s{53+i}, s{53+i}, s46")
    a("s_waitcnt lgkmcnt(0)")
    srd(a, 24, 20, ACT_SIZE)
    srd(a, 28, 20, W2P_SIZE, W2P_OFF)
    srd(a, 32, 20, G_SIZE, G_OFF)
    srd(a, 36, 18, 2048*1280)
    steps = [(0,i) for i in range(4)] + [(1,0)] + [(2,i) for i in range(12)]
    NB = 5
    def buf(st): return 36*(st % NB)
    def loads(st):
        kind, i = steps[st]
        b = buf(st)
        ops = []
        def pre():
            a(f"s_add_u32 s60, s{50+kind}, {i*1024}")
            a(f"s_add_u32 s61, s{53+kind}, {i*5120}")
        first = True
        order = [("w",0),("a",0),("w",1),("w",2),("w",3),("w",4),("a",1),("a",2),("a",3)]
        for ty, n in order:
            def f(ty=ty, n=n, first=first):
                if first: pre()
                if ty == "w":
                    if n < 4: a.vmem(f"buffer_load_dwordx4 {vr(b+16+4*n,4,'a')}, v{VA}, s[28:31], s61 offen offset:{n*1024}", (st,ty,n))
                    else: a.vmem(f"buffer_load_dwordx4 {vr(b+16+4*n,4,'a')}, v{VB}, s[28:31], s61 offen", (st,ty,n))
                elif kind == 1:
                    a.vmem(f"buffer_load_dwordx2 {vr(b+4*n,2,'a')}, v{VE+n}, s[24:27], s60 offen", (st,ty,n))
                    a.vmem(f"buffer_load_dwordx2 {vr(b+4*n+2,2,'a')}, v{VE+n}, s[24:27], s60 offen offset:128", (st,ty,n))
                else:
                    a.vmem(f"buffer_load_dwordx4 {vr(b+4*n,4,'a')}, v{VT+n}, s[24:27], s60 offen", (st,ty,n))
            ops.append(f); first = False
        return ops
    PF = NB - 1
    for st in range(PF):
        for f in loads(st): f()
    a(f"v_and_b32 v{T0}, 15, v{LANE}")
    a(f"v_lshlrev_b32 v{T0}, 2, v{T0}")
    a("s_lshl_b32 s62, s3, 8")
    for T in range(4):
        a.vmem(f"buffer_load_dword v{GR+T}, v{T0}, s[32:35], s62 offen offset:{T*64}", "g")
    G = Gaps()
    for st in range(17):
        b = buf(st); kind, i = steps[st]
        accb = 0 if kind < 2 else 80
        first = st == 0 or st == 5
        g0 = None
        for T in range(4):
            for jt in range(5):
                def f(st=st, T=T, jt=jt, b=b, accb=accb, first=first):
                    a.wait(vm=[(st,"w",jt),(st,"a",T)])
                    acc = accb + 4*(5*T+jt)
                    c = "0" if first else vr(acc,4)
                    a(f"v_mfma_f32_16x16x32_bf16 {vr(acc,4)}, {vr(b+16+4*jt,4,'a')}, {vr(b+4*T,4,'a')}, {c}")
                gi = G.add(f)
                if g0 is None: g0 = gi
        if st + PF < 17:
            for n, f in enumerate(loads(st+PF)): G.put(g0 + 2*n, f)
    G.put(0, lambda: a.P.stamp(2)); G.put(160, lambda: a.P.stamp(3))
    G.emit()
    a.P.stamp(4)
    a.wait(vm=["g"])
    for T in range(4): a(f"v_sub_f32 v{GR+4+T}, 1.0, v{GR+T}")
    for T in range(4):
        for i in range(20): a(f"v_mul_f32 v{20*T+i}, v{GR+T}, v{20*T+i}")
    for T in range(4):
        for i in range(20): a(f"v_fmac_f32 v{20*T+i}, v{GR+4+T}, v{80+20*T+i}")
    a("s_mul_i32 s60, s44, 5120")
    a(f"v_add_u32 v{T0}, s60, v{VA}")
    a(f"v_add_u32 v{T1}, 40960, v{T0}")
    for T in range(4):
        for jt in range(5):
            reg = T0 if T < 2 else T1
            a.lds(f"ds_write_b128 v{reg}, {vr(20*T+4*jt,4)} offset:{(T%2)*20480 + jt*1024}")
    a("s_mul_i32 s60, s44, 20480")
    T0 = 163
    a(f"v_add_u32 v{T0}, s60, v{VA}")
    a.wait(lg_all=True)
    a("s_barrier")
    a.P.stamp(5)
    for jt in range(5):
        for s in range(4):
            a.lds(f"ds_read_b128 {vr(80+20*s+4*jt,4)}, v{T0} offset:{s*5120 + jt*1024}", ("r",jt))
    a(f"v_and_b32 v{T1}, 15, v{LANE}")
    a(f"v_mul_u32_u24 v{T1}, 1280, v{T1}")
    a(f"v_lshrrev_b32 v{VB}, 4, v{LANE}")
    a(f"v_lshl_add_u32 v{T1}, v{VB}, 3, v{T1}")
    a("s_lshl_b32 s60, s3, 2")
    a("s_add_u32 s60, s60, s44")
    a(f"s_mul_i32 s60, s60, {16*1280}")
    a("s_mul_i32 s61, s22, 160")
    a("s_add_u32 s60, s60, s61")
    for jt in range(5):
        a.wait(lg=[("r",jt)])
        for i in range(4):
            r = 80 + 4*jt + i
            a(f"v_add_f32 v{r}, v{r}, v{r+20}")
            a(f"v_add_f32 v{r+40}, v{r+40}, v{r+60}")
        for i in range(4):
            r = 80 + 4*jt + i
            a(f"v_add_f32 v{r}, v{r}, v{r+40}")
        r = 80 + 4*jt
        a(f"v_cvt_pk_bf16_f32 v{r}, v{r}, v{r+1}")
        a(f"v_cvt_pk_bf16_f32 v{r+1}, v{r+2}, v{r+3}")
        a.vmem(f"buffer_store_dwordx2 {vr(r,2)}, v{T1}, s[36:39], s60 offen offset:{32*jt}")
    a.P.finish()
    a.label("L_k2_exit")
    a("s_endpgm")

def kd(name, nv=512, acc=256):
    return f""".p2align 6
.amdhsa_kernel {name}
  .amdhsa_next_free_vgpr {nv}
  .amdhsa_next_free_sgpr 102
  .amdhsa_accum_offset {acc}
  .amdhsa_group_segment_fixed_size 0
  .amdhsa_kernarg_size 88
  .amdhsa_user_sgpr_count 2
  .amdhsa_user_sgpr_kernarg_segment_ptr 1
  .amdhsa_system_sgpr_workgroup_id_x 1
.end_amdhsa_kernel
"""
def main(out):
    a = Asm()
    a.raw("; @launch kernel=k1_kernel grid=(256,1,1) block=(256,1,1) lds=147456")
    a.raw("; @launch kernel=k2_kernel grid=(256,1,1) block=(256,1,1) lds=81920")
    a.raw('.amdgcn_target "amdgcn-amd-amdhsa--gfx950"')
    a.raw(".text")
    gen_K1(a)
    gen_K2(a)
    a.label("CODE_END")
    a("s_endpgm")
    a.raw('.section .rodata,"a"')
    a.raw(kd("k1_kernel")); a.raw(kd("k2_kernel"))
    open(out, "w").write(a.text())
main(sys.argv[1])
```
